```python
import torch

def _softmax(x, axis=-1):
    return torch.softmax(x, dim=axis)
def _gelu(x):
    return torch.nn.functional.gelu(x, approximate="tanh")
def _silu(x):
    return torch.nn.functional.silu(x)
def _sigmoid(x):
    return torch.sigmoid(x)
def _layernorm(x, axis=-1, eps=1e-5):
    m = x.mean(dim=axis, keepdim=True)
    v = x.var(dim=axis, keepdim=True, unbiased=False)
    return (x - m) / torch.sqrt(v + eps)
def _scatter_add(tgt, idx, src, axis=0):
    return tgt.clone().index_add_(axis, idx, src)
def _segment_sum(src, seg, n):
    out = torch.zeros((n,) + src.shape[1:], dtype=src.dtype)
    return out.index_add_(0, seg, src)
def _pad(x, pw):
    flat = tuple(v for pair in reversed(pw) for v in pair)
    return torch.nn.functional.pad(x, flat)

kernel_name = 'recurrent_scan__sliding_block_cached__dense_activation_relu__decode'

def setup_inputs():

    _w = (lambda a: (lambda t: t.to(torch.bfloat16) if t.is_floating_point() else t)(torch.as_tensor(a)))
    def _A_setup():
        B, Sq, D = 2, 1, 1024
        Hq, Hkv, Sk, Dh = 32, 4, 32768, 128
        assert Hq % Hkv == 0, (Hq, Hkv)
        return {
            "x": _w((lambda *s: torch.randn(*s, dtype=torch.bfloat16) * 0.05)(B, Sq, D)),
            "k_cache": _w((lambda *s: torch.randn(*s, dtype=torch.bfloat16) * 1.6)(B, Hkv, Sk, Dh)),
            "v_cache": _w((lambda *s: torch.randn(*s, dtype=torch.bfloat16) * 0.2)(B, Hkv, Sk, Dh)),
            "wq": _w((lambda *s: torch.randn(*s, dtype=torch.bfloat16) * 1.6)(D, Hq * Dh) * (D ** -0.5)),
            "wo": _w((lambda *s: torch.randn(*s, dtype=torch.bfloat16) * 0.2)(Hq * Dh, D) * ((Hq * Dh) ** -0.5)),
        }
    _A_in = _A_setup()

    def _B_setup():
        B, S, D, Dff = 2, 1, 1024, 3584
        return {
            "x": _w((lambda *s: torch.randn(*s, dtype=torch.bfloat16) * 0.05)(B, S, D)),
            "w1": _w((lambda *s: torch.randn(*s, dtype=torch.bfloat16) * 0.1)(D, Dff)),
            "w2": _w((lambda *s: torch.randn(*s, dtype=torch.bfloat16) * 0.1)(Dff, D)),
        }
    _B_in = _B_setup()

    return {
        "A_x": _A_in["x"],
        "A_k_cache": _A_in["k_cache"],
        "A_v_cache": _A_in["v_cache"],
        "A_wq": _A_in["wq"],
        "A_wo": _A_in["wo"],
        "B_x": _B_in["x"],
        "B_w1": _B_in["w1"],
        "B_w2": _B_in["w2"],
    }

def reference(A_x, A_k_cache, A_v_cache, A_wq, A_wo, B_x, B_w1, B_w2):
    def _A_ref(x, k_cache, v_cache, wq, wo):
        B, Sq, D = x.shape
        Hq, Dh = 32, 128
        Hkv, Sk = k_cache.shape[1], k_cache.shape[2]
        W = min(4096, max(256, Sk // 4))
        rep = Hq // Hkv
        q = (lambda x, *d: x.permute(*d))((x @ wq).reshape(B, Sq, Hq, Dh), 0, 2, 1, 3)
        k = (lambda x, n, axis: torch.repeat_interleave(x, n, dim=axis))(k_cache[:, :, Sk - W:, :], rep, axis=1)
        v = (lambda x, n, axis: torch.repeat_interleave(x, n, dim=axis))(v_cache[:, :, Sk - W:, :], rep, axis=1)
        scores = torch.einsum("bhqd,bhkd->bhqk", q, k) * (Dh ** -0.5)
        p = _softmax(scores, axis=-1)
        o = torch.einsum("bhqk,bhkd->bhqd", p, v)
        return (lambda x, *d: x.permute(*d))(o, 0, 2, 1, 3).reshape(B, Sq, Hq * Dh) @ wo

    def _B_ref(x, w1, w2):
        h = torch.einsum("bsd,df->bsf", x, w1)
        zero = torch.zeros_like(h)
        h = torch.maximum(h, zero)
        return torch.einsum("bsf,fd->bsd", h, w2)

    x = A_x
    xn = _layernorm(x, axis=-1)
    s = _A_ref(xn, A_k_cache, A_v_cache, A_wq, A_wo)
    g = _silu(_B_ref(xn, B_w1, B_w2))
    return x + s * g
```

```python
import sys
NAME = "recurrent_scan__sliding_block_cached__dense_activation_relu__decode"

WS_EPOCH = 0
WS_Q  = 0x1000
WS_H  = WS_Q + 0x40000
WS_O  = WS_H + 0x38000
WS_ML = WS_O + 0x100000
WS_S  = WS_ML + 0x8000
WS_Y  = WS_S + 0x40000
WS_END = WS_Y + 0x38000
WS_STAMP = 0x8000000

SLOT_A = 0
SLOT_B = 32768
SLOT_C = 65536
SM = 98304
L_XN = SM
L_Q  = L_XN + 2 * 272
L_P  = L_Q + 8 * 272
L_O  = L_P + 8 * 272
L_H  = L_O + 2 * 272
L_M  = L_H + 2 * 272
LDS_BYTES = L_M + 256
assert L_M % 16 == 0

TAGMASK = 0xfff
SPIN_MAX = 1 << 16

def gen(stamps=False):
    o = []
    A = lambda s: o.append("    " + s)
    Lb = lambda s: o.append(s + ":")
    C = lambda s: o.append("    ; " + s)
    nstamp = [0]
    def stamp():
        if stamps:
            i = nstamp[0]; nstamp[0] += 1
            assert i < 14
            A(f"s_memrealtime s[{70+2*i}:{71+2*i}]")
    hdr = open(f"cdna_kernels/{NAME}.s.ref").read().split("; Override launch geometry")[0]
    o.append(hdr.rstrip())
    o.append(f"; @launch grid=(256,1,1) block=(512,1,1) lds={LDS_BYTES}")
    o.append('.amdgcn_target "amdgcn-amd-amdhsa--gfx950"')
    o.append(".text"); o.append(f".globl {NAME}_kernel"); o.append(".p2align 8"); o.append(f".type {NAME}_kernel,@function")
    Lb(f"{NAME}_kernel")
    S_WQ, S_K, S_V, S_W1, S_WO, S_W2, S_WS, S_X, S_OUT = 24, 28, 32, 36, 40, 44, 48, 52, 56
    srd = lambda r: f"s[{r}:{r+3}]"
    stamp()
    A("s_cmp_ge_u32 s2, 256")
    A("s_cbranch_scc1 L_end")
    A("s_load_dwordx16 s[4:19], s[0:1], 0")
    A("s_load_dwordx2 s[20:21], s[0:1], 64")
    A("s_load_dwordx2 s[22:23], s[0:1], 80")
    A("v_and_b32 v1, 63, v0")
    A("v_lshrrev_b32 v12, 6, v0")
    A("v_and_b32 v2, 15, v1")
    A("v_lshrrev_b32 v3, 4, v1")
    A("v_readfirstlane_b32 s3, v12")
    A("s_and_b32 s60, s2, 7")
    A("s_lshr_b32 s61, s2, 3")
    A("v_lshlrev_b32 v12, 1, v3")
    A("v_xor_b32 v4, v2, v12")
    A("v_lshlrev_b32 v4, 4, v4")
    A("v_lshl_add_u32 v5, v3, 13, v4")
    A("v_xor_b32 v6, 0x80, v5")
    for r, sz in ((S_WQ, 8388608), (S_K, 67108864), (S_V, 67108864), (S_W1, 7340032), (S_WO, 8388608), (S_W2, 7340032),
                  (S_WS, 268435456), (S_X, 4096), (S_OUT, 4096)):
        A(f"s_mov_b32 s{r+2}, {sz}")
        A(f"s_mov_b32 s{r+3}, 0x20000")
    A("s_lshl_b32 s63, s60, 20")
    A("s_lshl_b32 s64, s3, 17")
    A("s_add_u32 s63, s63, s64")
    A("s_lshl_b32 s64, s61, 8")
    A("s_add_u32 s63, s63, s64")
    A("s_lshl_b32 s65, s3, 12")
    A(f"s_add_u32 m0, s65, {SLOT_A}")
    A("v_lshlrev_b32 v13, 5, v1")
    A("s_lshl_b32 s64, s3, 11")
    A("s_waitcnt lgkmcnt(0)")
    A(f"s_mov_b32 s{S_X}, s4"); A(f"s_mov_b32 s{S_X+1}, s5")
    A(f"s_mov_b32 s{S_WQ}, s10"); A(f"s_mov_b32 s{S_WQ+1}, s11")
    A("s_load_dword s62, s[22:23], 0")
    A(f"buffer_load_dwordx4 v[16:19], v13, {srd(S_X)}, s64 offen")
    A(f"buffer_load_dwordx4 v[20:23], v13, {srd(S_X)}, s64 offen offset:16")
    def dma_tile(S, rb, va, vb):
        for k in range(4):
            A(f"buffer_load_dwordx4 v{va if k < 2 else vb}, {srd(S)}, s63 offen offset:{k*1024} nt lds")
            if k < 3 and 4 * rb != 1024:
                A(f"s_add_u32 s63, s63, {4*rb - 1024}")
    dma_tile(S_WQ, 8192, 5, 6)
    for r, p in ((S_K, 6), (S_V, 8), (S_W1, 16), (S_WO, 12), (S_W2, 18), (S_WS, 22), (S_OUT, 20)):
        A(f"s_mov_b32 s{r}, s{p}"); A(f"s_mov_b32 s{r+1}, s{p+1}")
    A("s_lshl_b32 s68, s60, 23")
    A("s_lshl_b32 s64, s61, 15")
    A("s_add_u32 s68, s68, s64")
    A("s_add_u32 s68, s68, s65")
    A(f"s_add_u32 s68, s68, {28672*256}")
    A("v_lshlrev_b32 v14, 8, v2")
    A("v_lshl_add_u32 v14, v3, 4, v14")
    A("s_barrier")
    for s in range(4):
        A(f"buffer_load_dwordx4 v[{24+4*s}:{27+4*s}], v14, {srd(S_K)}, s68 offen offset:{64*s} nt")
    A("s_cmp_lg_u32 s3, 2")
    A("s_cbranch_scc1 L_nopf")
    A("s_getpc_b64 s[64:65]")
    Lb("L_pc")
    A("v_lshlrev_b32 v15, 7, v1")
    A("v_min_u32 v15, (L_end - L_pc), v15")
    A("global_load_dword v40, v15, s[64:65]")
    A("s_lshl_b32 s65, s3, 12")
    Lb("L_nopf")
    A("v_lshrrev_b32 v12, 2, v2")
    A("v_and_b32 v13, 1, v3")
    A("v_lshl_or_b32 v13, v13, 2, v12")
    A("v_lshlrev_b32 v13, 1, v13")
    A("v_bfe_u32 v15, v2, 1, 1")
    A("s_lshl_b32 s64, s3, 1")
    A("v_add_u32 v15, s64, v15")
    A("v_xor_b32 v15, v15, v13")
    A("v_lshl_add_u32 v12, v3, 3, v12")
    A("v_lshlrev_b32 v12, 8, v12")
    A("v_lshl_add_u32 v7, v15, 4, v12")
    A("v_and_b32 v13, 1, v2")
    A("v_lshl_add_u32 v7, v13, 3, v7")
    A("v_add_u32 v8, 0x10000, v7")
    A("v_mul_u32_u24 v9, 272, v13")
    A("v_lshl_add_u32 v9, v3, 4, v9")
    A(f"v_add_u32 v9, {SM}, v9")
    A("v_and_b32 v13, 7, v2")
    A("v_mul_u32_u24 v10, 272, v13")
    A("v_lshl_add_u32 v10, v3, 4, v10")
    A(f"v_add_u32 v10, {SM}, v10")
    A(f"s_movk_i32 s67, {TAGMASK}")
    A("s_waitcnt lgkmcnt(0)")
    A("s_add_u32 s69, s62, 1")
    A("s_and_b32 s62, s69, s67")
    A("v_mov_b32 v11, s62")
    A("s_cmp_ge_u32 s3, 2")
    A("s_cbranch_scc1 L_ln_done")
    A("s_waitcnt vmcnt(8)")
    for i in range(8):
        A(f"v_lshlrev_b32 v{44+2*i}, 16, v{16+i}")
        A(f"v_and_b32 v{45+2*i}, 0xffff0000, v{16+i}")
    def tree_sum(dst, regs, tmpb):
        cur = list(regs); t = tmpb
        while len(cur) > 1:
            nxt = []
            for a in range(0, len(cur), 2):
                d = dst if len(cur) == 2 else t
                A(f"v_add_f32 v{d}, v{cur[a]}, v{cur[a+1]}")
                nxt.append(d); t += 1
            cur = nxt
    def wave_sum(v, sdst):
        for dpp in ("quad_perm:[1,0,3,2] row_mask:0xf bank_mask:0xf", "quad_perm:[2,3,0,1] row_mask:0xf bank_mask:0xf",
                    "row_half_mirror row_mask:0xf bank_mask:0xf", "row_mirror row_mask:0xf bank_mask:0xf",
                    "row_bcast:15 row_mask:0xa bank_mask:0xf", "row_bcast:31 row_mask:0xc bank_mask:0xf"):
            A("s_nop 1")
            A(f"v_add_f32_dpp v{v}, v{v}, v{v} {dpp}")
        A("s_nop 0")
        A(f"v_readlane_b32 s{sdst}, v{v}, 63")
    tree_sum(60, range(44, 60), 64)
    wave_sum(60, 63)
    A("s_nop 1")
    A("v_mov_b32 v61, s63")
    A("v_mul_f32 v61, 0x3a800000, v61")
    for i in range(16):
        A(f"v_sub_f32 v{64+i}, v{44+i}, v61")
    A("v_mul_f32 v60, v64, v64")
    A("v_mul_f32 v62, v65, v65")
    for i in range(2, 16, 2):
        A(f"v_fmac_f32 v60, v{64+i}, v{64+i}")
        A(f"v_fmac_f32 v62, v{65+i}, v{65+i}")
    A("v_add_f32 v60, v60, v62")
    wave_sum(60, 63)
    A("s_nop 1")
    A("v_mov_b32 v62, s63")
    A("v_mul_f32 v62, 0x3a800000, v62")
    A("v_cvt_pk_bf16_f32 v63, v61, v62")
    A("v_lshlrev_b32 v61, 16, v63")
    A("v_and_b32 v62, 0xffff0000, v63")
    A("v_add_f32 v62, 0x3727c5ac, v62")
    A("v_cvt_pk_bf16_f32 v62, v62, v62")
    A("v_lshlrev_b32 v62, 16, v62")
    A("v_sqrt_f32 v62, v62")
    A("s_nop 0")
    A("v_cvt_pk_bf16_f32 v62, v62, v62")
    A("v_lshlrev_b32 v62, 16, v62")
    A("v_rcp_f32 v63, v62")
    for i in range(16):
        A(f"v_sub_f32 v{64+i}, v{44+i}, v61")
    for i in range(8):
        A(f"v_cvt_pk_bf16_f32 v{44+i}, v{64+2*i}, v{65+2*i}")
    for i in range(8):
        A(f"v_lshlrev_b32 v{64+2*i}, 16, v{44+i}")
        A(f"v_and_b32 v{65+2*i}, 0xffff0000, v{44+i}")
    for i in range(16):
        A(f"v_mul_f32 v{80+i}, v{64+i}, v63")
    for i in range(16):
        A(f"v_fma_f32 v{64+i}, -v{80+i}, v62, v{64+i}")
    for i in range(16):
        A(f"v_fmac_f32 v{80+i}, v{64+i}, v63")
    for i in range(8):
        A(f"v_cvt_pk_bf16_f32 v{44+i}, v{80+2*i}, v{81+2*i}")
    A("v_lshrrev_b32 v60, 3, v1")
    A("v_and_b32 v61, 7, v1")
    A("v_lshlrev_b32 v61, 5, v61")
    A("s_mul_i32 s63, s3, 272")
    A(f"s_add_u32 s63, s63, {L_XN}")
    A("v_add_u32 v61, s63, v61")
    A("v_cmp_eq_u32 vcc, s60, v60")
    A("s_and_saveexec_b64 s[64:65], vcc")
    A("ds_write_b128 v61, v[44:47]")
    A("ds_write_b128 v61, v[48:51] offset:16")
    A("s_mov_b64 exec, -1")
    A("s_lshl_b32 s65, s3, 12")
    Lb("L_ln_done")
    A("s_waitcnt vmcnt(4) lgkmcnt(0)")
    stamp()
    A("s_barrier")
    A("v_lshl_add_u32 v5, v3, 8, v4")
    A("v_xor_b32 v6, 0x80, v5")
    A(f"s_add_u32 m0, s65, {SLOT_B}")
    A("s_mov_b32 s63, s68")
    dma_tile(S_V, 256, 5, 6)
    def tr_reads(dst, slot):
        base = 8 if slot >= 65536 else 7
        so = slot - 65536 if slot >= 65536 else slot
        for s in range(4):
            for h in range(2):
                A(f"ds_read_b64_tr_b16 v[{dst+4*s+2*h}:{dst+4*s+2*h+1}], v{base} offset:{so + s*8192 + h*1024}")
    def act_reads(dst, vaddr, buf):
        for s in range(4):
            A(f"ds_read_b128 v[{dst+4*s}:{dst+4*s+3}], v{vaddr} offset:{buf - SM + s*64}")
    def mfma4(acc, a, b):
        for s in range(4):
            cc = "0" if s == 0 else f"v[{acc}:{acc+3}]"
            A(f"v_mfma_f32_16x16x32_bf16 v[{acc}:{acc+3}], v[{a+4*s}:{a+4*s+3}], v[{b+4*s}:{b+4*s+3}], {cc}")
    def tag4(r):
        for i in range(4):
            A(f"v_bfi_b32 v{r+i}, s67, v11, v{r+i}")
    VA, VXN, VB, VD = 44, 60, 76, 92
    tr_reads(VA, SLOT_A)
    act_reads(VXN, 9, L_XN)
    A("v_lshlrev_b32 v12, 17, v2")
    A("v_lshl_add_u32 v12, v3, 4, v12")
    A("s_lshl_b32 s63, s61, 12")
    A("s_lshl_b32 s64, s60, 9")
    A("s_add_u32 s63, s63, s64")
    A("s_lshl_b32 s64, s3, 6")
    A("s_add_u32 s63, s63, s64")
    A(f"s_add_u32 s63, s63, {WS_Q}")
    A("v_cmp_gt_u32 vcc, 2, v2")
    A("s_waitcnt lgkmcnt(0)")
    mfma4(VD, VA, VXN)
    A("s_nop 7")
    tag4(VD)
    A("s_mov_b64 exec, vcc")
    A(f"buffer_store_dwordx4 v[{VD}:{VD+3}], v12, {srd(S_WS)}, s63 offen sc1")
    A("s_mov_b64 exec, -1")
    stamp()
    A("v_and_b32 v13, 31, v1")
    A("v_lshlrev_b32 v13, 4, v13")
    A("v_lshrrev_b32 v14, 5, v1")
    A("v_lshl_add_u32 v13, v14, 11, v13")
    A("s_lshr_b32 s63, s60, 2")
    A("s_lshl_b32 s63, s63, 17")
    A("s_and_b32 s64, s60, 3")
    A("s_lshl_b32 s64, s64, 15")
    A("s_add_u32 s63, s63, s64")
    A("s_add_u32 s63, s63, s65")
    A(f"s_add_u32 s66, s63, {WS_Q}")
    A("s_waitcnt vmcnt(5)")
    stamp()
    VG = 96
    def gather4(sreg):
        for k in range(4):
            A(f"buffer_load_dwordx4 v[{VG+4*k}:{VG+4*k+3}], v13, {srd(S_WS)}, s{sreg} offen offset:{512*k} sc1")
    gather4(66)
    A("s_movk_i32 s64, 7168")
    A("v_mul_lo_u32 v5, v3, s64")
    A("v_add_u32 v5, v5, v4")
    A("v_xor_b32 v6, 0x80, v5")
    A("s_lshl_b32 s63, s60, 3")
    A("s_add_u32 s63, s63, s3")
    A(f"s_mul_i32 s63, s63, {16*7168}")
    A("s_lshl_b32 s64, s61, 8")
    A("s_add_u32 s63, s63, s64")
    A(f"s_add_u32 m0, s65, {SLOT_C}")
    A("s_cmp_ge_u32 s61, 28")
    A("s_cselect_b32 s63, 0x20000000, s63")
    dma_tile(S_W1, 7168, 5, 6)
    def check_tags(regs, label, reissue, first_wait):
        A("s_mov_b32 s64, 0")
        A(f"s_waitcnt vmcnt({first_wait})")
        Lb(label)
        first = True
        for r in regs:
            tt = 0
            for idx in range(8):
                a, b, t = (idx >> 2) & 1, (idx >> 1) & 1, idx & 1
                if (a ^ t) | (b ^ t): tt |= 1 << idx
            A(f"v_bitop3_b32 v14, v{r}, v{r+1}, v11 bitop3:{tt:#x}")
            A(f"v_bitop3_b32 v15, v{r+2}, v{r+3}, v11 bitop3:{tt:#x}")
            if first:
                A("v_or_b32 v12, v14, v15"); first = False
            else:
                A("v_or3_b32 v12, v12, v14, v15")
        A("v_and_b32 v12, s67, v12")
        A("v_cmp_ne_u32 vcc, 0, v12")
        A(f"s_cbranch_vccz {label}_ok")
        A("s_add_u32 s64, s64, 1")
        A(f"s_cmp_gt_u32 s64, {SPIN_MAX}")
        A(f"s_cbranch_scc1 {label}_ok")
        reissue()
        A("s_waitcnt vmcnt(0)")
        A(f"s_branch {label}")
        Lb(label + "_ok")
    check_tags([VG, VG+4, VG+8, VG+12], "L_pq", lambda: gather4(66), 4)
    stamp()
    def sum4_half(dst):
        for i in range(0, 4, 2):
            A(f"v_pk_add_f32 v[{VG+i}:{VG+i+1}], v[{VG+i}:{VG+i+1}], v[{VG+4+i}:{VG+5+i}]")
            A(f"v_pk_add_f32 v[{VG+8+i}:{VG+9+i}], v[{VG+8+i}:{VG+9+i}], v[{VG+12+i}:{VG+13+i}]")
        for i in range(0, 4, 2):
            A(f"v_pk_add_f32 v[{VG+i}:{VG+i+1}], v[{VG+i}:{VG+i+1}], v[{VG+8+i}:{VG+9+i}]")
        for i in range(4):
            A(f"v_mov_b32 v{VG+4+i}, v{VG+i}")
        A("s_nop 1")
        for i in range(4):
            A(f"v_permlane32_swap_b32 v{VG+i}, v{VG+4+i}")
        A("s_nop 1")
        for i in range(0, 4, 2):
            A(f"v_pk_add_f32 v[{dst+i}:{dst+i+1}], v[{VG+i}:{VG+i+1}], v[{VG+4+i}:{VG+5+i}]")
    sum4_half(VG)
    A(f"v_cvt_pk_bf16_f32 v{VG+4}, v{VG}, v{VG+1}")
    A(f"v_cvt_pk_bf16_f32 v{VG+5}, v{VG+2}, v{VG+3}")
    A("v_and_b32 v12, 31, v1")
    A("v_lshlrev_b32 v12, 3, v12")
    A("s_mul_i32 s63, s3, 272")
    A(f"s_add_u32 s63, s63, {L_Q}")
    A("v_add_u32 v12, s63, v12")
    A(f"ds_write_b64 v12, v[{VG+4}:{VG+5}]")
    A("s_lshl_b32 s63, s60, 2")
    A("s_lshr_b32 s64, s61, 3")
    A("s_add_u32 s63, s63, s64")
    A("s_mov_b32 s59, s63") if False else None
    A("s_lshl_b32 s63, s63, 18")
    A("s_lshl_b32 s64, s3, 15")
    A("s_add_u32 s63, s63, s64")
    A("s_and_b32 s64, s61, 7")
    A("s_lshl_b32 s64, s64, 8")
    A("s_add_u32 s63, s63, s64")
    A("v_lshl_add_u32 v5, v3, 11, v4")
    A("v_xor_b32 v6, 0x80, v5")
    A(f"s_add_u32 m0, s65, {SLOT_A}")
    A("s_waitcnt lgkmcnt(0)")
    A("s_barrier")
    dma_tile(S_WO, 2048, 5, 6)
    act_reads(VB, 10, L_Q)
    tr_reads(VA, SLOT_B)
    A("s_waitcnt lgkmcnt(8)")
    mfma4(VD, 24, VB)
    A("s_mov_b32 s63, 0x3db504f3")
    A("s_mov_b32 s64, 0x3fb8aa3b")
    A("v_and_b32 v12, 7, v2")
    A("v_lshlrev_b32 v12, 5, v12")
    A(f"v_add_u32 v12, {L_M}, v12")
    A("s_lshl_b32 s66, s3, 2")
    A("v_add_u32 v14, s66, v12")
    A("s_nop 2")
    T = VG
    A(f"v_cvt_pk_bf16_f32 v{T}, v{VD}, v{VD+1}")
    A(f"v_cvt_pk_bf16_f32 v{T+1}, v{VD+2}, v{VD+3}")
    A(f"v_lshlrev_b32 v{T+2}, 16, v{T}")
    A(f"v_and_b32 v{T+3}, 0xffff0000, v{T}")
    A(f"v_lshlrev_b32 v{T+4}, 16, v{T+1}")
    A(f"v_and_b32 v{T+5}, 0xffff0000, v{T+1}")
    for i in range(4):
        A(f"v_mul_f32 v{T+2+i}, s63, v{T+2+i}")
    A(f"v_cvt_pk_bf16_f32 v{T}, v{T+2}, v{T+3}")
    A(f"v_cvt_pk_bf16_f32 v{T+1}, v{T+4}, v{T+5}")
    A(f"v_lshlrev_b32 v{T+2}, 16, v{T}")
    A(f"v_and_b32 v{T+3}, 0xffff0000, v{T}")
    A(f"v_lshlrev_b32 v{T+4}, 16, v{T+1}")
    A(f"v_and_b32 v{T+5}, 0xffff0000, v{T+1}")
    A(f"v_max3_f32 v{T+6}, v{T+2}, v{T+3}, v{T+4}")
    A(f"v_max_f32 v{T+6}, v{T+6}, v{T+5}")
    A(f"v_mov_b32 v{T+7}, v{T+6}")
    A("s_nop 1")
    A(f"v_permlane16_swap_b32 v{T+6}, v{T+7}")
    A("s_nop 1")
    A(f"v_max_f32 v{T+6}, v{T+6}, v{T+7}")
    A(f"v_mov_b32 v{T+7}, v{T+6}")
    A("s_nop 1")
    A(f"v_permlane32_swap_b32 v{T+6}, v{T+7}")
    A("s_nop 1")
    A(f"v_max_f32 v{T+6}, v{T+6}, v{T+7}")
    A(f"ds_write_b32 v14, v{T+6}")
    A("s_waitcnt lgkmcnt(0)")
    A("s_barrier")
    A(f"ds_read_b128 v[{T+8}:{T+11}], v12")
    A(f"ds_read_b128 v[{T+12}:{T+15}], v12 offset:16")
    A("v_and_b32 v14, 7, v2")
    A("v_mul_u32_u24 v14, 272, v14")
    A("v_lshl_add_u32 v14, v3, 3, v14")
    A("s_lshl_b32 s66, s3, 5")
    A(f"s_add_u32 s66, s66, {L_P}")
    A("v_add_u32 v14, s66, v14")
    A("s_waitcnt lgkmcnt(0)")
    A(f"v_max3_f32 v{T+6}, v{T+8}, v{T+9}, v{T+10}")
    A(f"v_max3_f32 v{T+7}, v{T+11}, v{T+12}, v{T+13}")
    A(f"v_max3_f32 v{T+6}, v{T+6}, v{T+14}, v{T+15}")
    A(f"v_max_f32 v{T+6}, v{T+6}, v{T+7}")
    for i in range(4):
        A(f"v_sub_f32 v{T+2+i}, v{T+2+i}, v{T+6}")
    for i in range(4):
        A(f"v_mul_f32 v{T+2+i}, s64, v{T+2+i}")
    for i in range(4):
        A(f"v_exp_f32 v{T+2+i}, v{T+2+i}")
    A("s_nop 0")
    A(f"v_cvt_pk_bf16_f32 v{T}, v{T+2}, v{T+3}")
    A(f"v_cvt_pk_bf16_f32 v{T+1}, v{T+4}, v{T+5}")
    A(f"ds_write_b64 v14, v[{T}:{T+1}]")
    for i in range(4):
        A(f"v_mov_b32 v{T+8+i}, 0x3f803f80")
    A("v_lshlrev_b32 v12, 15, v2")
    A("v_lshl_add_u32 v12, v3, 4, v12")
    A("s_and_b32 s63, s60, 3")
    A("s_lshl_b32 s63, s63, 18")
    A("s_lshr_b32 s64, s60, 2")
    A("s_lshl_b32 s64, s64, 14")
    A("s_add_u32 s63, s63, s64")
    A("s_lshl_b32 s64, s61, 9")
    A("s_add_u32 s63, s63, s64")
    A("s_lshr_b32 s66, s63, 5")
    A("s_lshl_b32 s64, s3, 6")
    A("s_add_u32 s63, s63, s64")
    A(f"s_add_u32 s63, s63, {WS_O}")
    A(f"s_add_u32 s66, s66, {WS_ML}")
    A("v_lshlrev_b32 v14, 10, v2")
    A("v_cmp_gt_u32 vcc, 8, v2")
    A("s_waitcnt lgkmcnt(0)")
    A("s_barrier")
    act_reads(VB, 10, L_P)
    A("s_waitcnt lgkmcnt(0)")
    mfma4(VD, VA, VB)
    A("s_cmp_lg_u32 s3, 0")
    A("s_cbranch_scc1 L_noL")
    for s in range(4):
        cc = "0" if s == 0 else f"v[{T+12}:{T+15}]"
        A(f"v_mfma_f32_16x16x32_bf16 v[{T+12}:{T+15}], v[{T+8}:{T+11}], v[{VB+4*s}:{VB+4*s+3}], {cc}")
    Lb("L_noL")
    A("s_nop 7")
    tag4(VD)
    A("s_mov_b64 exec, vcc")
    A(f"buffer_store_dwordx4 v[{VD}:{VD+3}], v12, {srd(S_WS)}, s63 offen sc1")
    A("s_cbranch_scc1 L_noML")
    A(f"v_mov_b32 v{T+13}, v{T+12}")
    A(f"v_mov_b32 v{T+12}, v{T+6}")
    tag4(T+12)
    A("s_mov_b64 exec, 0xff")
    A(f"buffer_store_dwordx4 v[{T+12}:{T+15}], v14, {srd(S_WS)}, s66 offen sc1")
    Lb("L_noML")
    A("s_mov_b64 exec, -1")
    stamp()
    A("s_cmp_ge_u32 s61, 28")
    A("s_cbranch_scc1 L_skip_h")
    A("s_waitcnt vmcnt(5)")
    A("s_barrier")
    tr_reads(VA, SLOT_C)
    A("v_lshlrev_b32 v12, 12, v2")
    A("v_lshl_add_u32 v12, v3, 4, v12")
    A("s_lshl_b32 s63, s61, 13")
    A("s_lshl_b32 s64, s60, 9")
    A("s_add_u32 s63, s63, s64")
    A("s_lshl_b32 s64, s3, 6")
    A("s_add_u32 s63, s63, s64")
    A(f"s_add_u32 s63, s63, {WS_H}")
    A("v_cmp_gt_u32 vcc, 2, v2")
    A("s_waitcnt lgkmcnt(0)")
    mfma4(VD, VA, VXN)
    A("s_nop 7")
    tag4(VD)
    A("s_mov_b64 exec, vcc")
    A(f"buffer_store_dwordx4 v[{VD}:{VD+3}], v12, {srd(S_WS)}, s63 offen sc1")
    A("s_mov_b64 exec, -1")
    Lb("L_skip_h")
    stamp()
    A("v_and_b32 v12, 7, v1")
    A("v_lshlrev_b32 v12, 4, v12")
    A("v_lshrrev_b32 v14, 3, v1")
    A("v_lshl_add_u32 v40, v14, 11, v12")
    A("v_and_b32 v41, 31, v1")
    A("v_lshlrev_b32 v41, 4, v41")
    A("s_lshl_b32 s63, s60, 2")
    A("s_lshr_b32 s64, s61, 3")
    A("s_add_u32 s63, s63, s64")
    A("s_lshl_b32 s63, s63, 1")
    A("s_lshr_b32 s64, s3, 2")
    A("s_add_u32 s63, s63, s64")
    A("s_lshl_b32 s4, s63, 9")
    A(f"s_add_u32 s4, s4, {WS_ML}")
    A("s_lshl_b32 s63, s63, 14")
    A("s_and_b32 s64, s3, 3")
    A("s_lshl_b32 s64, s64, 7")
    A("s_add_u32 s63, s63, s64")
    A(f"s_add_u32 s66, s63, {WS_O}")
    def ogather():
        for k in range(4):
            A(f"buffer_load_dwordx4 v[{VG+4*k}:{VG+4*k+3}], v40, {srd(S_WS)}, s66 offen offset:{512*k} sc1")
        A(f"buffer_load_dwordx4 v[{VG+16}:{VG+19}], v41, {srd(S_WS)}, s4 offen sc1")
    ogather()
    A("s_mul_i32 s5, s60, 28")
    A("s_add_u32 s5, s5, s61")
    A("s_lshr_b32 s6, s5, 3")
    A("s_and_b32 s7, s5, 7")
    A("s_lshl_b32 s63, s6, 18")
    A("s_lshl_b32 s64, s3, 15")
    A("s_add_u32 s63, s63, s64")
    A("s_lshl_b32 s64, s7, 8")
    A("s_add_u32 s63, s63, s64")
    A(f"s_add_u32 m0, s65, {SLOT_B}")
    A("s_cmp_ge_u32 s61, 28")
    A("s_cselect_b32 s63, 0x20000000, s63")
    dma_tile(S_W2, 2048, 5, 6)
    check_tags([VG, VG+4, VG+8, VG+12, VG+16], "L_po", ogather, 4)
    stamp()
    A("s_mov_b32 s64, 0x3fb8aa3b")
    MM, LL = VG + 16, VG + 17
    A(f"v_and_b32 v{MM}, 0xffff0000, v{MM}")
    A(f"v_mov_b32 v{VG+18}, v{MM}")
    for dpp in ("quad_perm:[1,0,3,2]", "quad_perm:[2,3,0,1]", "row_half_mirror", "row_mirror"):
        A("s_nop 1")
        A(f"v_max_f32_dpp v{VG+18}, v{VG+18}, v{VG+18} {dpp} row_mask:0xf bank_mask:0xf")
    A(f"v_mov_b32 v{VG+19}, v{VG+18}")
    A("s_nop 1")
    A(f"v_permlane16_swap_b32 v{VG+18}, v{VG+19}")
    A("s_nop 1")
    A(f"v_max_f32 v{VG+18}, v{VG+18}, v{VG+19}")
    A(f"v_sub_f32 v{MM}, v{MM}, v{VG+18}")
    A(f"v_mul_f32 v{MM}, s64, v{MM}")
    A(f"v_exp_f32 v{MM}, v{MM}")
    A("s_nop 0")
    A(f"v_mul_f32 v{LL}, v{LL}, v{MM}")
    for dpp in ("quad_perm:[1,0,3,2]", "quad_perm:[2,3,0,1]", "row_half_mirror", "row_mirror"):
        A("s_nop 1")
        A(f"v_add_f32_dpp v{LL}, v{LL}, v{LL} {dpp} row_mask:0xf bank_mask:0xf")
    A(f"v_mov_b32 v{VG+19}, v{LL}")
    A("s_nop 1")
    A(f"v_permlane16_swap_b32 v{LL}, v{VG+19}")
    A("s_nop 1")
    A(f"v_add_f32 v{LL}, v{LL}, v{VG+19}")
    A(f"v_rcp_f32 v{LL}, v{LL}")
    A("v_lshrrev_b32 v14, 3, v1")
    A("v_lshlrev_b32 v14, 4, v14")
    A(f"v_mul_f32 v{MM}, v{MM}, v{LL}")
    for k in range(4):
        A(f"ds_bpermute_b32 v{VB+k}, v14, v{MM} offset:{4*k}")
    tr_reads(VA, SLOT_A) if False else None
    A("s_waitcnt lgkmcnt(0)")
    for i in range(4):
        A(f"v_mul_f32 v{VD+i}, v{VG+i}, v{VB}")
    for k in range(1, 4):
        for i in range(4):
            A(f"v_fmac_f32 v{VD+i}, v{VG+4*k+i}, v{VB+k}")
    A("s_nop 0")
    for i in range(4):
        A(f"v_add_f32_dpp v{VD+i}, v{VD+i}, v{VD+i} row_ror:8 row_mask:0xf bank_mask:0xf")
    for swap in ("v_permlane16_swap_b32", "v_permlane32_swap_b32"):
        for i in range(4):
            A(f"v_mov_b32 v{VG+i}, v{VD+i}")
        A("s_nop 1")
        for i in range(4):
            A(f"{swap} v{VD+i}, v{VG+i}")
        A("s_nop 1")
        for i in range(0, 4, 2):
            A(f"v_pk_add_f32 v[{VD+i}:{VD+i+1}], v[{VD+i}:{VD+i+1}], v[{VG+i}:{VG+i+1}]")
    A(f"v_cvt_pk_bf16_f32 v{VG}, v{VD}, v{VD+1}")
    A(f"v_cvt_pk_bf16_f32 v{VG+1}, v{VD+2}, v{VD+3}")
    A("v_and_b32 v12, 7, v1")
    A("v_lshlrev_b32 v12, 3, v12")
    A("s_lshr_b32 s63, s3, 2")
    A("s_mul_i32 s63, s63, 272")
    A("s_and_b32 s64, s3, 3")
    A("s_lshl_b32 s64, s64, 6")
    A("s_add_u32 s63, s63, s64")
    A(f"s_add_u32 s63, s63, {L_O}")
    A("v_add_u32 v12, s63, v12")
    A(f"ds_write_b64 v12, v[{VG}:{VG+1}]")
    A("v_lshlrev_b32 v42, 4, v2")
    A("v_lshl_add_u32 v42, v3, 5, v42")
    A("s_and_b32 s63, s61, 7")
    A("s_lshl_b32 s63, s63, 5")
    A("s_lshl_b32 s64, s60, 2")
    A("s_add_u32 s63, s63, s64")
    A("s_lshr_b32 s64, s61, 3")
    A("s_add_u32 s63, s63, s64")
    A("s_lshl_b32 s63, s63, 10")
    A("s_lshl_b32 s64, s3, 7")
    A("s_add_u32 s63, s63, s64")
    A(f"s_add_u32 s63, s63, {WS_S}")
    A("v_cmp_gt_u32 vcc, 2, v2")
    A("s_waitcnt lgkmcnt(0)")
    A("s_barrier")
    act_reads(VB, 9, L_O)
    tr_reads(VA, SLOT_A)
    A("s_waitcnt lgkmcnt(0)")
    mfma4(VD, VA, VB)
    A("s_nop 7")
    tag4(VD)
    A("s_mov_b64 exec, vcc")
    A(f"buffer_store_dwordx4 v[{VD}:{VD+3}], v42, {srd(S_WS)}, s63 offen sc1")
    A("s_mov_b64 exec, -1")
    stamp()
    A("s_cmp_ge_u32 s61, 28")
    A("s_cbranch_scc1 L_skip_y")
    A("s_cmp_ge_u32 s3, 2")
    A("s_cbranch_scc1 L_hg_done")
    A("s_lshl_b32 s63, s6, 13")
    A("s_add_u32 s63, s63, s65")
    A(f"s_add_u32 s66, s63, {WS_H}")
    gather4(66)
    check_tags([VG, VG+4, VG+8, VG+12], "L_ph", lambda: gather4(66), 0)
    sum4_half(VG)
    for i in range(4):
        A(f"v_max_f32 v{VG+i}, 0, v{VG+i}")
    A(f"v_cvt_pk_bf16_f32 v{VG+4}, v{VG}, v{VG+1}")
    A(f"v_cvt_pk_bf16_f32 v{VG+5}, v{VG+2}, v{VG+3}")
    A("v_and_b32 v12, 31, v1")
    A("v_lshlrev_b32 v12, 3, v12")
    A("s_mul_i32 s63, s3, 272")
    A(f"s_add_u32 s63, s63, {L_H}")
    A("v_add_u32 v12, s63, v12")
    A(f"ds_write_b64 v12, v[{VG+4}:{VG+5}]")
    Lb("L_hg_done")
    A("s_mul_i32 s63, s7, 28")
    A("s_add_u32 s63, s63, s6")
    A("s_lshl_b32 s63, s63, 10")
    A("s_lshl_b32 s64, s3, 7")
    A("s_add_u32 s63, s63, s64")
    A(f"s_add_u32 s63, s63, {WS_Y}")
    A("v_cmp_gt_u32 vcc, 2, v2")
    A("s_waitcnt vmcnt(0) lgkmcnt(0)")
    stamp()
    A("s_barrier")
    act_reads(VB, 9, L_H)
    tr_reads(VA, SLOT_B)
    A("s_waitcnt lgkmcnt(0)")
    mfma4(VD, VA, VB)
    A("s_nop 7")
    tag4(VD)
    A("s_mov_b64 exec, vcc")
    A(f"buffer_store_dwordx4 v[{VD}:{VD+3}], v42, {srd(S_WS)}, s63 offen sc1")
    A("s_mov_b64 exec, -1")
    Lb("L_skip_y")
    stamp()
    A("s_cmp_lg_u32 s3, 0")
    A("s_cbranch_scc1 L_fin")
    A("v_and_b32 v12, 31, v1")
    A("v_lshrrev_b32 v14, 5, v1")
    A("v_lshlrev_b32 v14, 4, v14")
    A("v_lshl_add_u32 v40, v12, 10, v14")
    A("v_min_u32 v12, 27, v12")
    A("v_lshl_add_u32 v41, v12, 10, v14")
    A("s_lshl_b32 s63, s60, 15")
    A("s_lshl_b32 s64, s61, 5")
    A("s_add_u32 s63, s63, s64")
    A(f"s_add_u32 s66, s63, {WS_S}")
    A(f"s_mul_i32 s63, s60, {28*1024}")
    A("s_add_u32 s63, s63, s64")
    A(f"s_add_u32 s4, s63, {WS_Y}")
    A("v_lshlrev_b32 v42, 7, v14")
    A("s_lshl_b32 s5, s60, 8")
    A("s_lshl_b32 s64, s61, 3")
    A("s_add_u32 s5, s5, s64")
    A(f"buffer_load_dwordx2 v[{VB}:{VB+1}], v42, {srd(S_X)}, s5 offen")
    def fgather():
        A(f"buffer_load_dwordx4 v[{VG}:{VG+3}], v40, {srd(S_WS)}, s66 offen sc1")
        A(f"buffer_load_dwordx4 v[{VG+4}:{VG+7}], v41, {srd(S_WS)}, s4 offen sc1")
    fgather()
    check_tags([VG, VG+4], "L_pf", fgather, 0)
    stamp()
    A("v_and_b32 v12, 31, v1")
    A("v_cmp_gt_u32 vcc, 28, v12")
    A("s_nop 1")
    for i in range(4):
        A(f"v_cndmask_b32 v{VG+4+i}, 0, v{VG+4+i}, vcc")
    for dpp in ("quad_perm:[1,0,3,2] row_mask:0xf", "quad_perm:[2,3,0,1] row_mask:0xf", "row_half_mirror row_mask:0xf",
                "row_mirror row_mask:0xf", "row_bcast:15 row_mask:0xa"):
        for i in range(8):
            A(f"v_add_f32_dpp v{VG+i}, v{VG+i}, v{VG+i} {dpp} bank_mask:0xf")
    def rnd4(r, t):
        A(f"v_cvt_pk_bf16_f32 v{t}, v{r}, v{r+1}")
        A(f"v_cvt_pk_bf16_f32 v{t+1}, v{r+2}, v{r+3}")
        A(f"v_lshlrev_b32 v{r}, 16, v{t}")
        A(f"v_and_b32 v{r+1}, 0xffff0000, v{t}")
        A(f"v_lshlrev_b32 v{r+2}, 16, v{t+1}")
        A(f"v_and_b32 v{r+3}, 0xffff0000, v{t+1}")
    rnd4(VG, VG+8)
    rnd4(VG+4, VG+8)
    A("s_mov_b32 s64, 0xbfb8aa3b")
    for i in range(4):
        A(f"v_mul_f32 v{VG+8+i}, s64, v{VG+4+i}")
    for i in range(4):
        A(f"v_exp_f32 v{VG+8+i}, v{VG+8+i}")
    A("s_nop 0")
    for i in range(4):
        A(f"v_add_f32 v{VG+8+i}, 1.0, v{VG+8+i}")
    for i in range(4):
        A(f"v_rcp_f32 v{VG+8+i}, v{VG+8+i}")
    A("s_nop 0")
    for i in range(4):
        A(f"v_mul_f32 v{VG+4+i}, v{VG+4+i}, v{VG+8+i}")
    rnd4(VG+4, VG+8)
    for i in range(4):
        A(f"v_mul_f32 v{VG+i}, v{VG+i}, v{VG+4+i}")
    rnd4(VG, VG+8)
    A(f"v_lshlrev_b32 v{VG+4}, 16, v{VB}")
    A(f"v_and_b32 v{VG+5}, 0xffff0000, v{VB}")
    A(f"v_lshlrev_b32 v{VG+6}, 16, v{VB+1}")
    A(f"v_and_b32 v{VG+7}, 0xffff0000, v{VB+1}")
    for i in range(4):
        A(f"v_add_f32 v{VG+i}, v{VG+i}, v{VG+4+i}")
    A(f"v_cvt_pk_bf16_f32 v{VG+8}, v{VG}, v{VG+1}")
    A(f"v_cvt_pk_bf16_f32 v{VG+9}, v{VG+2}, v{VG+3}")
    A("s_mov_b32 s64, 0x80000000")
    A("s_mov_b32 exec_lo, s64")
    A("s_mov_b32 exec_hi, s64")
    A(f"buffer_store_dwordx2 v[{VG+8}:{VG+9}], v42, {srd(S_OUT)}, s5 offen")
    A("s_cmp_lg_u32 s2, 0")
    A("s_cbranch_scc1 L_fin")
    A("s_mov_b64 exec, 1")
    A("v_mov_b32 v12, 0")
    A("v_mov_b32 v14, s69")
    A(f"buffer_store_dword v14, v12, {srd(S_WS)}, 0 offen sc1")
    Lb("L_fin")
    if stamps:
        A("s_mov_b64 exec, -1")
        stamp()
        A("s_waitcnt lgkmcnt(0)")
        A("v_mov_b32 v12, 0")
        for i in range(nstamp[0]):
            A(f"v_writelane_b32 v12, s{70+2*i}, {i}")
        A("s_lshl_b32 s63, s2, 9")
        A("s_lshl_b32 s64, s3, 6")
        A("s_add_u32 s63, s63, s64")
        A(f"s_add_u32 s63, s63, {WS_STAMP}")
        A("v_lshlrev_b32 v14, 2, v1")
        A("s_mov_b64 exec, 0xffff")
        A(f"buffer_store_dword v12, v14, {srd(S_WS)}, s63 offen")
    Lb("L_end")
    A("s_endpgm")
    o.append('.section .rodata,"a"'); o.append(".p2align 6")
    o.append(f".amdhsa_kernel {NAME}_kernel")
    for l in ("next_free_vgpr 120", "next_free_sgpr 100", "accum_offset 120", "group_segment_fixed_size 0", "kernarg_size 88",
              "user_sgpr_count 2", "user_sgpr_kernarg_segment_ptr 1", "system_sgpr_workgroup_id_x 1"):
        o.append("  .amdhsa_" + l)
    o.append(".end_amdhsa_kernel")
    return "\n".join(x for x in o if x is not None) + "\n"

if __name__ == "__main__":
    open(f"cdna_kernels/{NAME}.s", "w").write(gen(False))
    open(f"v1_stamps.s", "w").write(gen(True))
```

```python
import sys
NAME = "recurrent_scan__sliding_block_cached__dense_activation_relu__decode"

WS_EPOCH = 0
WS_Q  = 0x1000
WS_H  = WS_Q + 0x40000
WS_O  = WS_H + 0x38000
WS_ML = WS_O + 0x100000
WS_S  = WS_ML + 0x8000
WS_Y  = WS_S + 0x40000
WS_STAMP = 0x8000000

SLOT_A, SLOT_B, SLOT_C, SLOT_D = 0, 32768, 65536, 98304
SM = 131072
L_XN = SM
L_Q  = L_XN + 2 * 272
L_P  = L_Q + 8 * 272
L_O  = L_P + 8 * 272
L_H  = L_O + 2 * 272
L_M  = L_H + 2 * 272
L_F  = L_M + 256
LDS_BYTES = L_F + 64
F_LAND = 0
F_BAR  = 1
F_FREEA = 2
F_FREED = 3
F_XN = 4

TAGMASK = 0xfff
SPIN_MAX = 1 << 16
LSPIN_MAX = 1 << 22

def gen(stamps=False, G0=15, G=8, order=("wq", "K", "V", "w1", "wo", "w2")):
    o = []
    A = lambda s: o.append("    " + s)
    Lb = lambda s: o.append(s + ":")
    nstamp = [0]
    uid = [0]
    def stamp():
        if stamps:
            i = nstamp[0]; nstamp[0] += 1
            assert i < 14
            A(f"s_memrealtime s[{70+2*i}:{71+2*i}]")
    hdr = open(f"cdna_kernels/{NAME}.s.ref").read().split("; Override launch geometry")[0]
    o.append(hdr.rstrip())
    o.append(f"; @launch grid=(256,1,1) block=(576,1,1) lds={LDS_BYTES}")
    o.append('.amdgcn_target "amdgcn-amd-amdhsa--gfx950"')
    o.append(".text"); o.append(f".globl {NAME}_kernel"); o.append(".p2align 8"); o.append(f".type {NAME}_kernel,@function")
    Lb(f"{NAME}_kernel")
    S_WQ, S_K, S_V, S_W1, S_WO, S_W2, S_WS, S_X, S_OUT = 24, 28, 32, 36, 40, 44, 48, 52, 56
    srd = lambda r: f"s[{r}:{r+3}]"
    land = {m: i + 1 for i, m in enumerate(order)}
    stamp()
    A("s_cmp_ge_u32 s2, 256")
    A("s_cbranch_scc1 L_end")
    A("s_load_dwordx16 s[4:19], s[0:1], 0")
    A("s_load_dwordx2 s[20:21], s[0:1], 64")
    A("s_load_dwordx2 s[22:23], s[0:1], 80")
    A("v_and_b32 v1, 63, v0")
    A("v_lshrrev_b32 v12, 6, v0")
    A("v_and_b32 v2, 15, v1")
    A("v_lshrrev_b32 v3, 4, v1")
    A("v_readfirstlane_b32 s3, v12")
    A("s_and_b32 s60, s2, 7")
    A("s_lshr_b32 s61, s2, 3")
    A(f"v_mov_b32 v44, {L_F}")
    A("v_mov_b32 v14, 0")
    A("v_lshl_add_u32 v15, v2, 2, v44")
    A("ds_write_b32 v15, v14")
    A("v_lshlrev_b32 v13, 5, v1")
    A(f"s_mov_b32 s{S_X+2}, 4096")
    A(f"s_mov_b32 s{S_X+3}, 0x20000")
    A("s_sub_u32 s3, s3, 1")
    A("s_lshl_b32 s64, s3, 11")
    A("s_and_b32 s64, s64, 0x7fffffff")
    A("v_lshlrev_b32 v12, 1, v3")
    A("v_xor_b32 v4, v2, v12")
    A("v_lshlrev_b32 v4, 4, v4")
    A("v_lshl_add_u32 v28, v3, 13, v4")
    A("v_xor_b32 v29, 0x80, v28")
    A("s_lshl_b32 s63, s60, 20")
    A("s_lshl_b32 s65, s61, 8")
    A("s_add_u32 s63, s63, s65")
    A(f"s_mov_b32 s{S_WQ+2}, 8388608")
    A(f"s_mov_b32 s{S_WQ+3}, 0x20000")
    A("s_cmp_lt_i32 s3, 0")
    A("s_waitcnt lgkmcnt(0)")
    A("s_barrier")
    A(f"s_mov_b32 s{S_X}, s4"); A(f"s_mov_b32 s{S_X+1}, s5")
    A(f"s_mov_b32 s{S_WQ}, s10"); A(f"s_mov_b32 s{S_WQ+1}, s11")
    A("s_cbranch_scc1 L_loader")
    A(f"buffer_load_dwordx4 v[16:19], v13, {srd(S_X)}, s64 offen")
    A(f"buffer_load_dwordx4 v[20:23], v13, {srd(S_X)}, s64 offen offset:16")
    A("s_load_dword s62, s[22:23], 0")
    A("s_cmp_lg_u32 s3, 2")
    A("s_cbranch_scc1 L_compute")
    A("s_getpc_b64 s[64:65]")
    Lb("L_pc")
    A("v_lshlrev_b32 v15, 7, v1")
    A("v_min_u32 v15, (L_end - L_pc), v15")
    A("global_load_dword v43, v15, s[64:65]")
    A("s_branch L_compute")
    Lb("L_loader")
    def lds_wait(idx, target):
        uid[0] += 1
        l = f"L_lw{uid[0]}"
        A("s_mov_b32 s98, 0")
        Lb(l)
        A(f"ds_read_b32 v46, v44 offset:{4*idx}")
        A("s_add_u32 s98, s98, 1")
        A(f"s_cmp_gt_u32 s98, {LSPIN_MAX}")
        A(f"s_cbranch_scc1 {l}_x")
        A("s_waitcnt lgkmcnt(0)")
        A(f"v_cmp_gt_u32 vcc, {target}, v46")
        A(f"s_cbranch_vccnz {l}")
        Lb(l + "_x")
    def lds_arrive(idx):
        A("s_mov_b64 exec, 1")
        A(f"ds_add_u32 v44, v45 offset:{4*idx}")
        A("s_mov_b64 exec, -1")
    tinfo = {"wq": (S_WQ, 8192, SLOT_A), "K": (S_K, 256, SLOT_D), "V": (S_V, 256, SLOT_B), "w1": (S_W1, 7168, SLOT_C),
             "wo": (S_WO, 2048, SLOT_A), "w2": (S_W2, 2048, SLOT_D)}
    def setup(m):
        if m == "wq":
            return (28, 28, 29, 29)
        if m in ("K", "V"):
            A("s_lshl_b32 s63, s60, 23")
            A("s_lshl_b32 s64, s61, 15")
            A("s_add_u32 s63, s63, s64")
            A(f"s_add_u32 s63, s63, {28672*256}")
            if m == "K":
                A("v_xor_b32 v18, v2, v3")
                A("v_lshlrev_b32 v18, 4, v18")
                A("v_lshl_add_u32 v18, v3, 8, v18")
                A("v_xor_b32 v19, 0x40, v18")
                A("v_xor_b32 v20, 0x80, v18")
                A("v_xor_b32 v21, 0xc0, v18")
                return (18, 19, 20, 21)
            A("v_lshl_add_u32 v22, v3, 8, v4")
            A("v_xor_b32 v23, 0x80, v22")
            return (22, 22, 23, 23)
        if m == "w1":
            A("s_movk_i32 s64, 7168")
            A("v_mul_lo_u32 v24, v3, s64")
            A("v_add_u32 v24, v24, v4")
            A("v_xor_b32 v25, 0x80, v24")
            A(f"s_mul_i32 s63, s60, {128*7168}")
            A("s_lshl_b32 s64, s61, 8")
            A("s_add_u32 s63, s63, s64")
            return (24, 24, 25, 25)
        A("v_lshl_add_u32 v26, v3, 11, v4")
        A("v_xor_b32 v27, 0x80, v26")
        if m == "wo":
            A("s_lshl_b32 s63, s60, 2")
            A("s_lshr_b32 s64, s61, 3")
            A("s_add_u32 s63, s63, s64")
            A("s_lshl_b32 s63, s63, 18")
            A("s_and_b32 s64, s61, 7")
            A("s_lshl_b32 s64, s64, 8")
            A("s_add_u32 s63, s63, s64")
        else:
            A("s_mul_i32 s5, s60, 28")
            A("s_add_u32 s5, s5, s61")
            A("s_lshr_b32 s63, s5, 3")
            A("s_lshl_b32 s63, s63, 18")
            A("s_and_b32 s64, s5, 7")
            A("s_lshl_b32 s64, s64, 8")
            A("s_add_u32 s63, s63, s64")
        return (26, 26, 27, 27)
    def set_flag(val):
        A(f"v_mov_b32 v30, {val}")
        A(f"ds_write_b32 v44, v30 offset:{4*F_LAND}")
        stamp()
    def tile_loop(m, vr, g_from, g_to, win, label):
        S, rb, slot = tinfo[m]
        if g_to <= g_from: return
        A(f"s_mov_b32 s66, {g_to - g_from}")
        Lb(label)
        if win is not None: A(f"s_waitcnt vmcnt({4*(win-1)})")
        for k in range(4):
            A(f"buffer_load_dwordx4 v{vr[k]}, {srd(S)}, s63 offen offset:{k*1024} nt lds")
            inc = 4 * rb - 1024 if k < 3 else 4 * rb + 3072
            if inc: A(f"s_add_u32 s63, s63, {inc}")
        A("s_add_u32 m0, m0, 4096")
        A("s_sub_u32 s66, s66, 1")
        A("s_cmp_lg_u32 s66, 0")
        A(f"s_cbranch_scc1 {label}")
    flagged = 0
    for t, m in enumerate(order):
        S, rb, slot = tinfo[m]
        skip = m in ("w1", "w2")
        if skip:
            A("s_cmp_ge_u32 s61, 28")
            A(f"s_cbranch_scc1 L_sk{t}")
        vr = setup(m)
        if m == "wo": lds_wait(F_FREEA, 8)
        if m == "w2": lds_wait(F_FREED, 8)
        A(f"s_mov_b32 m0, {slot}")
        win = G0 if t < 2 else G
        g = 0; part = 0
        while g < 8:
            u = flagged
            gf = 8 * (u + 1) + (win - 1) - 8 * t
            if u < t and gf <= g:
                A(f"s_waitcnt vmcnt({4*(8*t + g - 8*(u+1))})")
                set_flag(u + 1); flagged += 1
                continue
            ge = min(8, gf) if u < t else 8
            tile_loop(m, vr, g, ge, None if t == 0 else win, f"L_t{t}_{part}"); part += 1
            g = ge
        if t == 0:
            for r, p, sz in ((S_K, 6, 67108864), (S_V, 8, 67108864), (S_W1, 16, 7340032), (S_WO, 12, 8388608), (S_W2, 18, 7340032), (S_WS, 22, 268435456)):
                A(f"s_mov_b32 s{r}, s{p}"); A(f"s_mov_b32 s{r+1}, s{p+1}")
                A(f"s_mov_b32 s{r+2}, {sz}"); A(f"s_mov_b32 s{r+3}, 0x20000")
        if skip:
            A(f"s_branch L_ns{t}")
            Lb(f"L_sk{t}")
            A("s_waitcnt vmcnt(0)")
            A(f"v_mov_b32 v30, {t}")
            A(f"ds_write_b32 v44, v30 offset:{4*F_LAND}")
            Lb(f"L_ns{t}")
    n = len(order)
    while flagged < n:
        rem = 8 * (n - 1 - flagged)
        A(f"s_waitcnt vmcnt({4*rem})")
        set_flag(flagged + 1); flagged += 1
    nst_loader = nstamp[0]
    A("s_branch L_fin")
    Lb("L_compute")
    nstamp[0] = 1
    for r, sz in ((S_WS, 268435456), (S_OUT, 4096)):
        A(f"s_mov_b32 s{r+2}, {sz}")
        A(f"s_mov_b32 s{r+3}, 0x20000")
    A("s_lshl_b32 s65, s3, 12")
    for r, p in ((S_WS, 22), (S_OUT, 20)):
        A(f"s_mov_b32 s{r}, s{p}"); A(f"s_mov_b32 s{r+1}, s{p+1}")
    A("v_lshrrev_b32 v12, 2, v2")
    A("v_and_b32 v13, 1, v3")
    A("v_lshl_or_b32 v13, v13, 2, v12")
    A("v_lshlrev_b32 v13, 1, v13")
    A("v_bfe_u32 v15, v2, 1, 1")
    A("s_lshl_b32 s64, s3, 1")
    A("v_add_u32 v15, s64, v15")
    A("v_xor_b32 v15, v15, v13")
    A("v_lshl_add_u32 v12, v3, 3, v12")
    A("v_lshlrev_b32 v12, 8, v12")
    A("v_lshl_add_u32 v7, v15, 4, v12")
    A("v_and_b32 v13, 1, v2")
    A("v_lshl_add_u32 v7, v13, 3, v7")
    A("v_add_u32 v8, 0x10000, v7")
    A("v_mul_u32_u24 v9, 272, v13")
    A("v_lshl_add_u32 v9, v3, 4, v9")
    A(f"v_add_u32 v9, {SM}, v9")
    A("v_and_b32 v13, 7, v2")
    A("v_mul_u32_u24 v10, 272, v13")
    A("v_lshl_add_u32 v10, v3, 4, v10")
    A(f"v_add_u32 v10, {SM}, v10")
    A("v_mov_b32 v45, 1")
    A(f"s_movk_i32 s67, {TAGMASK}")
    A("s_waitcnt lgkmcnt(0)")
    A("s_add_u32 s69, s62, 1")
    A("s_and_b32 s62, s69, s67")
    A("v_mov_b32 v11, s62")

    nbar = [0]
    def cbar():
        nbar[0] += 1
        lds_arrive(F_BAR)
        lds_wait(F_BAR, 8 * nbar[0])

    X0 = 48
    A("s_cmp_ge_u32 s3, 2")
    A("s_cbranch_scc1 L_ln_done")
    A("s_waitcnt vmcnt(0)")
    for i in range(8):
        A(f"v_lshlrev_b32 v{X0+2*i}, 16, v{16+i}")
        A(f"v_and_b32 v{X0+1+2*i}, 0xffff0000, v{16+i}")
    def tree_sum(dst, regs, tmpb):
        cur = list(regs); t = tmpb
        while len(cur) > 1:
            nxt = []
            for a in range(0, len(cur), 2):
                d = dst if len(cur) == 2 else t
                A(f"v_add_f32 v{d}, v{cur[a]}, v{cur[a+1]}")
                nxt.append(d); t += 1
            cur = nxt
    def wave_sum(v, sdst):
        for dpp in ("quad_perm:[1,0,3,2] row_mask:0xf bank_mask:0xf", "quad_perm:[2,3,0,1] row_mask:0xf bank_mask:0xf",
                    "row_half_mirror row_mask:0xf bank_mask:0xf", "row_mirror row_mask:0xf bank_mask:0xf",
                    "row_bcast:15 row_mask:0xa bank_mask:0xf", "row_bcast:31 row_mask:0xc bank_mask:0xf"):
            A("s_nop 1")
            A(f"v_add_f32_dpp v{v}, v{v}, v{v} {dpp}")
        A("s_nop 0")
        A(f"v_readlane_b32 s{sdst}, v{v}, 63")
    a, b, c, d = 64, 65, 66, 67
    D0, E0 = 68, 84
    tree_sum(a, range(X0, X0 + 16), D0)
    wave_sum(a, 63)
    A("s_nop 1")
    A(f"v_mov_b32 v{b}, s63")
    A(f"v_mul_f32 v{b}, 0x3a800000, v{b}")
    for i in range(16):
        A(f"v_sub_f32 v{D0+i}, v{X0+i}, v{b}")
    A(f"v_mul_f32 v{a}, v{D0}, v{D0}")
    A(f"v_mul_f32 v{c}, v{D0+1}, v{D0+1}")
    for i in range(2, 16, 2):
        A(f"v_fmac_f32 v{a}, v{D0+i}, v{D0+i}")
        A(f"v_fmac_f32 v{c}, v{D0+1+i}, v{D0+1+i}")
    A(f"v_add_f32 v{a}, v{a}, v{c}")
    wave_sum(a, 63)
    A("s_nop 1")
    A(f"v_mov_b32 v{c}, s63")
    A(f"v_mul_f32 v{c}, 0x3a800000, v{c}")
    A(f"v_cvt_pk_bf16_f32 v{d}, v{b}, v{c}")
    A(f"v_lshlrev_b32 v{b}, 16, v{d}")
    A(f"v_and_b32 v{c}, 0xffff0000, v{d}")
    A(f"v_add_f32 v{c}, 0x3727c5ac, v{c}")
    A(f"v_cvt_pk_bf16_f32 v{c}, v{c}, v{c}")
    A(f"v_lshlrev_b32 v{c}, 16, v{c}")
    A(f"v_sqrt_f32 v{c}, v{c}")
    A("s_nop 0")
    A(f"v_cvt_pk_bf16_f32 v{c}, v{c}, v{c}")
    A(f"v_lshlrev_b32 v{c}, 16, v{c}")
    A(f"v_rcp_f32 v{d}, v{c}")
    for i in range(16):
        A(f"v_sub_f32 v{D0+i}, v{X0+i}, v{b}")
    for i in range(8):
        A(f"v_cvt_pk_bf16_f32 v{X0+i}, v{D0+2*i}, v{D0+1+2*i}")
    for i in range(8):
        A(f"v_lshlrev_b32 v{D0+2*i}, 16, v{X0+i}")
        A(f"v_and_b32 v{D0+1+2*i}, 0xffff0000, v{X0+i}")
    for i in range(16):
        A(f"v_mul_f32 v{E0+i}, v{D0+i}, v{d}")
    for i in range(16):
        A(f"v_fma_f32 v{D0+i}, -v{E0+i}, v{c}, v{D0+i}")
    for i in range(16):
        A(f"v_fmac_f32 v{E0+i}, v{D0+i}, v{d}")
    for i in range(8):
        A(f"v_cvt_pk_bf16_f32 v{X0+i}, v{E0+2*i}, v{E0+1+2*i}")
    A(f"v_lshrrev_b32 v{a}, 3, v1")
    A(f"v_and_b32 v{b}, 7, v1")
    A(f"v_lshlrev_b32 v{b}, 5, v{b}")
    A("s_mul_i32 s63, s3, 272")
    A(f"s_add_u32 s63, s63, {L_XN}")
    A(f"v_add_u32 v{b}, s63, v{b}")
    A(f"v_cmp_eq_u32 vcc, s60, v{a}")
    A("s_mov_b64 exec, vcc")
    A(f"ds_write_b128 v{b}, v[{X0}:{X0+3}]")
    A(f"ds_write_b128 v{b}, v[{X0+4}:{X0+7}] offset:16")
    lds_arrive(F_XN)
    Lb("L_ln_done")

    def tr_reads(dst, slot):
        base = 8 if slot >= 65536 else 7
        so = slot - 65536 if slot >= 65536 else slot
        for s in range(4):
            for h in range(2):
                A(f"ds_read_b64_tr_b16 v[{dst+4*s+2*h}:{dst+4*s+2*h+1}], v{base} offset:{so + s*8192 + h*1024}")
    def act_reads(dst, vaddr, buf):
        for s in range(4):
            A(f"ds_read_b128 v[{dst+4*s}:{dst+4*s+3}], v{vaddr} offset:{buf - SM + s*64}")
    def mfma4(acc, a, b):
        for s in range(4):
            cc = "0" if s == 0 else f"v[{acc}:{acc+3}]"
            A(f"v_mfma_f32_16x16x32_bf16 v[{acc}:{acc+3}], v[{a+4*s}:{a+4*s+3}], v[{b+4*s}:{b+4*s+3}], {cc}")
    def tag4(r):
        for i in range(4):
            A(f"v_bfi_b32 v{r+i}, s67, v11, v{r+i}")
    VK, VA, VXN, VB, VD, VG = 24, 48, 64, 80, 96, 100
    EX2 = "s[6:7]"
    EX8 = "s[8:9]"
    A("s_mov_b32 s6, 0x00030003"); A("s_mov_b32 s7, 0x00030003")
    A("s_mov_b32 s8, 0x00ff00ff"); A("s_mov_b32 s9, 0x00ff00ff")
    def publish(vaddr, ex):
        A("s_nop 7")
        tag4(VD)
        A(f"s_mov_b64 exec, {ex}")
        A(f"buffer_store_dwordx4 v[{VD}:{VD+3}], v{vaddr}, {srd(S_WS)}, s63 offen sc1")
        A("s_mov_b64 exec, -1")
    A("v_lshlrev_b32 v12, 17, v2")
    A("v_lshl_add_u32 v12, v3, 4, v12")
    A("s_lshl_b32 s63, s61, 12")
    A("s_lshl_b32 s64, s60, 9")
    A("s_add_u32 s63, s63, s64")
    A("s_lshl_b32 s64, s3, 6")
    A("s_add_u32 s63, s63, s64")
    A(f"s_add_u32 s63, s63, {WS_Q}")
    lds_wait(F_XN, 2)
    act_reads(VXN, 9, L_XN)
    lds_wait(F_LAND, land["wq"])
    stamp()
    tr_reads(VA, SLOT_A)
    A("s_waitcnt lgkmcnt(0)")
    mfma4(VD, VA, VXN)
    lds_arrive(F_FREEA)
    publish(12, EX2)
    stamp()
    A("v_and_b32 v13, 31, v1")
    A("v_lshlrev_b32 v13, 4, v13")
    A("v_lshrrev_b32 v14, 5, v1")
    A("v_lshl_add_u32 v13, v14, 11, v13")
    A("s_lshr_b32 s63, s60, 2")
    A("s_lshl_b32 s63, s63, 17")
    A("s_and_b32 s64, s60, 3")
    A("s_lshl_b32 s64, s64, 15")
    A("s_add_u32 s63, s63, s64")
    A("s_add_u32 s63, s63, s65")
    A(f"s_add_u32 s66, s63, {WS_Q}")
    A("v_xor_b32 v14, v2, v3")
    A("v_lshlrev_b32 v14, 4, v14")
    A("v_lshl_add_u32 v14, v2, 8, v14")
    A(f"s_add_u32 s63, s65, {SLOT_D}")
    A("v_add_u32 v14, s63, v14")
    A("v_xor_b32 v15, 0x40, v14")
    A("v_xor_b32 v40, 0x80, v14")
    A("v_xor_b32 v41, 0xc0, v14")
    lds_wait(F_LAND, land["K"])
    stamp()
    def gather4(sreg):
        for k in range(4):
            A(f"buffer_load_dwordx4 v[{VG+4*k}:{VG+4*k+3}], v13, {srd(S_WS)}, s{sreg} offen offset:{512*k} sc1")
    gather4(66)
    for k, vr in enumerate((14, 15, 40, 41)):
        A(f"ds_read_b128 v[{VK+4*k}:{VK+4*k+3}], v{vr}")
    A("s_waitcnt lgkmcnt(0)")
    lds_arrive(F_FREED)
    def tagtest(regs):
        first = True
        for r in regs:
            A(f"v_bitop3_b32 v14, v{r}, v{r+1}, v11 bitop3:0x7e")
            A(f"v_bitop3_b32 v15, v{r+2}, v{r+3}, v11 bitop3:0x7e")
            if first:
                A("v_or_b32 v12, v14, v15"); first = False
            else:
                A("v_or3_b32 v12, v12, v14, v15")
        A("v_and_b32 v12, s67, v12")
        A("v_cmp_ne_u32 vcc, 0, v12")
    def check_tags(regs, label, reissue):
        A("s_mov_b32 s64, 0")
        Lb(label)
        A("s_waitcnt vmcnt(0)")
        tagtest(regs)
        A(f"s_cbranch_vccz {label}_ok")
        A("s_add_u32 s64, s64, 1")
        A(f"s_cmp_gt_u32 s64, {SPIN_MAX}")
        A(f"s_cbranch_scc1 {label}_ok")
        A("s_mov_b64 exec, vcc")
        reissue()
        A("s_mov_b64 exec, -1")
        A(f"s_branch {label}")
        Lb(label + "_ok")
    check_tags([VG, VG+4, VG+8, VG+12], "L_pq", lambda: gather4(66))
    stamp()
    def sum4_half(dst):
        for i in range(0, 4, 2):
            A(f"v_pk_add_f32 v[{VG+i}:{VG+i+1}], v[{VG+i}:{VG+i+1}], v[{VG+4+i}:{VG+5+i}]")
            A(f"v_pk_add_f32 v[{VG+8+i}:{VG+9+i}], v[{VG+8+i}:{VG+9+i}], v[{VG+12+i}:{VG+13+i}]")
        for i in range(0, 4, 2):
            A(f"v_pk_add_f32 v[{VG+i}:{VG+i+1}], v[{VG+i}:{VG+i+1}], v[{VG+8+i}:{VG+9+i}]")
        for i in range(4):
            A(f"v_mov_b32 v{VG+4+i}, v{VG+i}")
        A("s_nop 1")
        for i in range(4):
            A(f"v_permlane32_swap_b32 v{VG+i}, v{VG+4+i}")
        A("s_nop 1")
        for i in range(0, 4, 2):
            A(f"v_pk_add_f32 v[{dst+i}:{dst+i+1}], v[{VG+i}:{VG+i+1}], v[{VG+4+i}:{VG+5+i}]")
    sum4_half(VG)
    A(f"v_cvt_pk_bf16_f32 v{VG+4}, v{VG}, v{VG+1}")
    A(f"v_cvt_pk_bf16_f32 v{VG+5}, v{VG+2}, v{VG+3}")
    A("v_and_b32 v42, 31, v1")
    A("v_lshlrev_b32 v42, 3, v42")
    A("s_mul_i32 s63, s3, 272")
    A(f"s_add_u32 s63, s63, {L_Q}")
    A("v_add_u32 v12, s63, v42")
    A(f"ds_write_b64 v12, v[{VG+4}:{VG+5}]")
    cbar()
    act_reads(VB, 10, L_Q)
    A("s_mov_b32 s63, 0x3db504f3")
    A("s_mov_b32 s64, 0x3fb8aa3b")
    A("v_and_b32 v12, 7, v2")
    A("v_lshlrev_b32 v12, 5, v12")
    A(f"v_add_u32 v12, {L_M}, v12")
    A("s_lshl_b32 s66, s3, 2")
    A("v_add_u32 v14, s66, v12")
    A("s_waitcnt lgkmcnt(0)")
    mfma4(VD, VK, VB)
    A("s_nop 7")
    T = VG
    A(f"v_cvt_pk_bf16_f32 v{T}, v{VD}, v{VD+1}")
    A(f"v_cvt_pk_bf16_f32 v{T+1}, v{VD+2}, v{VD+3}")
    A(f"v_lshlrev_b32 v{T+2}, 16, v{T}")
    A(f"v_and_b32 v{T+3}, 0xffff0000, v{T}")
    A(f"v_lshlrev_b32 v{T+4}, 16, v{T+1}")
    A(f"v_and_b32 v{T+5}, 0xffff0000, v{T+1}")
    for i in range(4):
        A(f"v_mul_f32 v{T+2+i}, s63, v{T+2+i}")
    A(f"v_cvt_pk_bf16_f32 v{T}, v{T+2}, v{T+3}")
    A(f"v_cvt_pk_bf16_f32 v{T+1}, v{T+4}, v{T+5}")
    A(f"v_lshlrev_b32 v{T+2}, 16, v{T}")
    A(f"v_and_b32 v{T+3}, 0xffff0000, v{T}")
    A(f"v_lshlrev_b32 v{T+4}, 16, v{T+1}")
    A(f"v_and_b32 v{T+5}, 0xffff0000, v{T+1}")
    A(f"v_max3_f32 v{T+6}, v{T+2}, v{T+3}, v{T+4}")
    A(f"v_max_f32 v{T+6}, v{T+6}, v{T+5}")
    A(f"v_mov_b32 v{T+7}, v{T+6}")
    A("s_nop 1")
    A(f"v_permlane16_swap_b32 v{T+6}, v{T+7}")
    A("s_nop 1")
    A(f"v_max_f32 v{T+6}, v{T+6}, v{T+7}")
    A(f"v_mov_b32 v{T+7}, v{T+6}")
    A("s_nop 1")
    A(f"v_permlane32_swap_b32 v{T+6}, v{T+7}")
    A("s_nop 1")
    A(f"v_max_f32 v{T+6}, v{T+6}, v{T+7}")
    A(f"ds_write_b32 v14, v{T+6}")
    A("v_and_b32 v14, 7, v2")
    A("v_mul_u32_u24 v14, 272, v14")
    A("v_lshl_add_u32 v14, v3, 3, v14")
    A("s_lshl_b32 s66, s3, 5")
    A(f"s_add_u32 s66, s66, {L_P}")
    A("v_add_u32 v14, s66, v14")
    cbar()
    A(f"ds_read_b128 v[{T+8}:{T+11}], v12")
    A(f"ds_read_b128 v[{T+12}:{T+15}], v12 offset:16")
    A("s_waitcnt lgkmcnt(0)")
    A(f"v_max3_f32 v{T+6}, v{T+8}, v{T+9}, v{T+10}")
    A(f"v_max3_f32 v{T+7}, v{T+11}, v{T+12}, v{T+13}")
    A(f"v_max3_f32 v{T+6}, v{T+6}, v{T+14}, v{T+15}")
    A(f"v_max_f32 v{T+6}, v{T+6}, v{T+7}")
    for i in range(4):
        A(f"v_sub_f32 v{T+2+i}, v{T+2+i}, v{T+6}")
    for i in range(4):
        A(f"v_mul_f32 v{T+2+i}, s64, v{T+2+i}")
    for i in range(4):
        A(f"v_exp_f32 v{T+2+i}, v{T+2+i}")
    A("s_nop 0")
    A(f"v_cvt_pk_bf16_f32 v{T}, v{T+2}, v{T+3}")
    A(f"v_cvt_pk_bf16_f32 v{T+1}, v{T+4}, v{T+5}")
    A(f"ds_write_b64 v14, v[{T}:{T+1}]")
    nbar[0] += 1
    lds_arrive(F_BAR)
    for i in range(4):
        A(f"v_mov_b32 v{T+8+i}, 0x3f803f80")
    A("v_lshlrev_b32 v12, 15, v2")
    A("v_lshl_add_u32 v12, v3, 4, v12")
    A("s_and_b32 s63, s60, 3")
    A("s_lshl_b32 s63, s63, 18")
    A("s_lshr_b32 s64, s60, 2")
    A("s_lshl_b32 s64, s64, 14")
    A("s_add_u32 s63, s63, s64")
    A("s_lshl_b32 s64, s61, 9")
    A("s_add_u32 s63, s63, s64")
    A("s_lshr_b32 s66, s63, 5")
    A("s_lshl_b32 s64, s3, 6")
    A("s_add_u32 s63, s63, s64")
    A(f"s_add_u32 s63, s63, {WS_O}")
    A(f"s_add_u32 s66, s66, {WS_ML}")
    A("v_lshlrev_b32 v14, 10, v2")
    lds_wait(F_LAND, land["V"])
    tr_reads(VA, SLOT_B)
    lds_wait(F_BAR, 8 * nbar[0])
    act_reads(VB, 10, L_P)
    A("s_waitcnt lgkmcnt(0)")
    mfma4(VD, VA, VB)
    A("s_cmp_lg_u32 s3, 0")
    A("s_cbranch_scc1 L_noL")
    for s in range(4):
        cc = "0" if s == 0 else f"v[{T+12}:{T+15}]"
        A(f"v_mfma_f32_16x16x32_bf16 v[{T+12}:{T+15}], v[{T+8}:{T+11}], v[{VB+4*s}:{VB+4*s+3}], {cc}")
    Lb("L_noL")
    publish(12, EX8)
    A("s_cbranch_scc1 L_noML")
    A(f"v_mov_b32 v{T+13}, v{T+12}")
    A(f"v_mov_b32 v{T+12}, v{T+6}")
    tag4(T+12)
    A("s_mov_b64 exec, 0xff")
    A(f"buffer_store_dwordx4 v[{T+12}:{T+15}], v14, {srd(S_WS)}, s66 offen sc1")
    A("s_mov_b64 exec, -1")
    Lb("L_noML")
    stamp()
    A("s_cmp_ge_u32 s61, 28")
    A("s_cbranch_scc1 L_skip_h")
    A("v_lshlrev_b32 v12, 12, v2")
    A("v_lshl_add_u32 v12, v3, 4, v12")
    A("s_lshl_b32 s63, s61, 13")
    A("s_lshl_b32 s64, s60, 9")
    A("s_add_u32 s63, s63, s64")
    A("s_lshl_b32 s64, s3, 6")
    A("s_add_u32 s63, s63, s64")
    A(f"s_add_u32 s63, s63, {WS_H}")
    lds_wait(F_LAND, land["w1"])
    tr_reads(VA, SLOT_C)
    A("s_waitcnt lgkmcnt(0)")
    mfma4(VD, VA, VXN)
    publish(12, EX2)
    Lb("L_skip_h")
    stamp()
    A("v_and_b32 v12, 7, v1")
    A("v_lshlrev_b32 v12, 4, v12")
    A("v_lshrrev_b32 v14, 3, v1")
    A("v_lshl_add_u32 v40, v14, 11, v12")
    A("v_and_b32 v41, 31, v1")
    A("v_lshlrev_b32 v41, 4, v41")
    A("s_lshl_b32 s63, s60, 2")
    A("s_lshr_b32 s64, s61, 3")
    A("s_add_u32 s63, s63, s64")
    A("s_lshl_b32 s63, s63, 1")
    A("s_lshr_b32 s64, s3, 2")
    A("s_add_u32 s63, s63, s64")
    A("s_lshl_b32 s4, s63, 9")
    A(f"s_add_u32 s4, s4, {WS_ML}")
    A("s_lshl_b32 s63, s63, 14")
    A("s_and_b32 s64, s3, 3")
    A("s_lshl_b32 s64, s64, 7")
    A("s_add_u32 s63, s63, s64")
    A(f"s_add_u32 s66, s63, {WS_O}")
    def ogather():
        for k in range(4):
            A(f"buffer_load_dwordx4 v[{VG+4*k}:{VG+4*k+3}], v40, {srd(S_WS)}, s66 offen offset:{512*k} sc1")
        A(f"buffer_load_dwordx4 v[{VG+16}:{VG+19}], v41, {srd(S_WS)}, s4 offen sc1")
    ogather()
    check_tags([VG, VG+4, VG+8, VG+12, VG+16], "L_po", ogather)
    stamp()
    A("s_mov_b32 s64, 0x3fb8aa3b")
    MM, LL = VG + 16, VG + 17
    A(f"v_and_b32 v{MM}, 0xffff0000, v{MM}")
    A(f"v_mov_b32 v{VG+18}, v{MM}")
    for dpp in ("quad_perm:[1,0,3,2]", "quad_perm:[2,3,0,1]", "row_half_mirror", "row_mirror"):
        A("s_nop 1")
        A(f"v_max_f32_dpp v{VG+18}, v{VG+18}, v{VG+18} {dpp} row_mask:0xf bank_mask:0xf")
    A(f"v_mov_b32 v{VG+19}, v{VG+18}")
    A("s_nop 1")
    A(f"v_permlane16_swap_b32 v{VG+18}, v{VG+19}")
    A("s_nop 1")
    A(f"v_max_f32 v{VG+18}, v{VG+18}, v{VG+19}")
    A(f"v_sub_f32 v{MM}, v{MM}, v{VG+18}")
    A(f"v_mul_f32 v{MM}, s64, v{MM}")
    A(f"v_exp_f32 v{MM}, v{MM}")
    A("s_nop 0")
    A(f"v_mul_f32 v{LL}, v{LL}, v{MM}")
    for dpp in ("quad_perm:[1,0,3,2]", "quad_perm:[2,3,0,1]", "row_half_mirror", "row_mirror"):
        A("s_nop 1")
        A(f"v_add_f32_dpp v{LL}, v{LL}, v{LL} {dpp} row_mask:0xf bank_mask:0xf")
    A(f"v_mov_b32 v{VG+19}, v{LL}")
    A("s_nop 1")
    A(f"v_permlane16_swap_b32 v{LL}, v{VG+19}")
    A("s_nop 1")
    A(f"v_add_f32 v{LL}, v{LL}, v{VG+19}")
    A(f"v_rcp_f32 v{LL}, v{LL}")
    A("v_lshrrev_b32 v14, 3, v1")
    A("v_lshlrev_b32 v14, 4, v14")
    A(f"v_mul_f32 v{MM}, v{MM}, v{LL}")
    for k in range(4):
        A(f"ds_bpermute_b32 v{VB+k}, v14, v{MM} offset:{4*k}")
    A("s_waitcnt lgkmcnt(0)")
    for i in range(4):
        A(f"v_mul_f32 v{VD+i}, v{VG+i}, v{VB}")
    for k in range(1, 4):
        for i in range(4):
            A(f"v_fmac_f32 v{VD+i}, v{VG+4*k+i}, v{VB+k}")
    A("s_nop 0")
    for i in range(4):
        A(f"v_add_f32_dpp v{VD+i}, v{VD+i}, v{VD+i} row_ror:8 row_mask:0xf bank_mask:0xf")
    for swap in ("v_permlane16_swap_b32", "v_permlane32_swap_b32"):
        for i in range(4):
            A(f"v_mov_b32 v{VG+i}, v{VD+i}")
        A("s_nop 1")
        for i in range(4):
            A(f"{swap} v{VD+i}, v{VG+i}")
        A("s_nop 1")
        for i in range(0, 4, 2):
            A(f"v_pk_add_f32 v[{VD+i}:{VD+i+1}], v[{VD+i}:{VD+i+1}], v[{VG+i}:{VG+i+1}]")
    A(f"v_cvt_pk_bf16_f32 v{VG}, v{VD}, v{VD+1}")
    A(f"v_cvt_pk_bf16_f32 v{VG+1}, v{VD+2}, v{VD+3}")
    A("v_and_b32 v12, 7, v1")
    A("v_lshlrev_b32 v12, 3, v12")
    A("s_lshr_b32 s63, s3, 2")
    A("s_mul_i32 s63, s63, 272")
    A("s_and_b32 s64, s3, 3")
    A("s_lshl_b32 s64, s64, 6")
    A("s_add_u32 s63, s63, s64")
    A(f"s_add_u32 s63, s63, {L_O}")
    A("v_add_u32 v12, s63, v12")
    A(f"ds_write_b64 v12, v[{VG}:{VG+1}]")
    nbar[0] += 1
    lds_arrive(F_BAR)
    A("v_lshlrev_b32 v43, 4, v2")
    A("v_lshl_add_u32 v43, v3, 5, v43")
    A("s_and_b32 s63, s61, 7")
    A("s_lshl_b32 s63, s63, 5")
    A("s_lshl_b32 s64, s60, 2")
    A("s_add_u32 s63, s63, s64")
    A("s_lshr_b32 s64, s61, 3")
    A("s_add_u32 s63, s63, s64")
    A("s_lshl_b32 s63, s63, 10")
    A("s_lshl_b32 s64, s3, 7")
    A("s_add_u32 s63, s63, s64")
    A(f"s_add_u32 s63, s63, {WS_S}")
    A("s_mul_i32 s5, s60, 28")
    A("s_add_u32 s5, s5, s61")
    A("s_lshr_b32 s10, s5, 3")
    A("s_and_b32 s11, s5, 7")
    lds_wait(F_LAND, land["wo"])
    tr_reads(VA, SLOT_A)
    lds_wait(F_BAR, 8 * nbar[0])
    act_reads(VB, 9, L_O)
    A("s_waitcnt lgkmcnt(0)")
    mfma4(VD, VA, VB)
    publish(43, EX2)
    stamp()
    A("s_cmp_ge_u32 s61, 28")
    A("s_cbranch_scc1 L_skip_y")
    A("s_cmp_ge_u32 s3, 2")
    A("s_cbranch_scc1 L_hg_done")
    A("s_lshl_b32 s63, s10, 13")
    A("s_add_u32 s63, s63, s65")
    A(f"s_add_u32 s66, s63, {WS_H}")
    gather4(66)
    check_tags([VG, VG+4, VG+8, VG+12], "L_ph", lambda: gather4(66))
    sum4_half(VG)
    for i in range(4):
        A(f"v_max_f32 v{VG+i}, 0, v{VG+i}")
    A(f"v_cvt_pk_bf16_f32 v{VG+4}, v{VG}, v{VG+1}")
    A(f"v_cvt_pk_bf16_f32 v{VG+5}, v{VG+2}, v{VG+3}")
    A("s_mul_i32 s63, s3, 272")
    A(f"s_add_u32 s63, s63, {L_H}")
    A("v_add_u32 v12, s63, v42")
    A(f"ds_write_b64 v12, v[{VG+4}:{VG+5}]")
    lds_arrive(F_XN)
    Lb("L_hg_done")
    A("s_mul_i32 s63, s11, 28")
    A("s_add_u32 s63, s63, s10")
    A("s_lshl_b32 s63, s63, 10")
    A("s_lshl_b32 s64, s3, 7")
    A("s_add_u32 s63, s63, s64")
    A(f"s_add_u32 s63, s63, {WS_Y}")
    lds_wait(F_LAND, land["w2"])
    tr_reads(VA, SLOT_D)
    lds_wait(F_XN, 4)
    stamp()
    act_reads(VB, 9, L_H)
    A("s_waitcnt lgkmcnt(0)")
    mfma4(VD, VA, VB)
    publish(43, EX2)
    Lb("L_skip_y")
    stamp()
    A("s_cmp_lg_u32 s3, 0")
    A("s_cbranch_scc1 L_fin")
    A("v_and_b32 v12, 31, v1")
    A("v_lshrrev_b32 v14, 5, v1")
    A("v_lshlrev_b32 v14, 4, v14")
    A("v_lshl_add_u32 v40, v12, 10, v14")
    A("v_min_u32 v12, 27, v12")
    A("v_lshl_add_u32 v41, v12, 10, v14")
    A("s_lshl_b32 s63, s60, 15")
    A("s_lshl_b32 s64, s61, 5")
    A("s_add_u32 s63, s63, s64")
    A(f"s_add_u32 s66, s63, {WS_S}")
    A(f"s_mul_i32 s63, s60, {28*1024}")
    A("s_add_u32 s63, s63, s64")
    A(f"s_add_u32 s4, s63, {WS_Y}")
    A("v_lshlrev_b32 v42, 7, v14")
    A("s_lshl_b32 s5, s60, 8")
    A("s_lshl_b32 s64, s61, 3")
    A("s_add_u32 s5, s5, s64")
    A(f"buffer_load_dwordx2 v[{VB}:{VB+1}], v42, {srd(S_X)}, s5 offen")
    def fgather():
        A(f"buffer_load_dwordx4 v[{VG}:{VG+3}], v40, {srd(S_WS)}, s66 offen sc1")
        A(f"buffer_load_dwordx4 v[{VG+4}:{VG+7}], v41, {srd(S_WS)}, s4 offen sc1")
    fgather()
    check_tags([VG, VG+4], "L_pf", fgather)
    stamp()
    A("v_and_b32 v12, 31, v1")
    A("v_cmp_gt_u32 vcc, 28, v12")
    A("s_nop 1")
    for i in range(4):
        A(f"v_cndmask_b32 v{VG+4+i}, 0, v{VG+4+i}, vcc")
    for dpp in ("quad_perm:[1,0,3,2] row_mask:0xf", "quad_perm:[2,3,0,1] row_mask:0xf", "row_half_mirror row_mask:0xf",
                "row_mirror row_mask:0xf", "row_bcast:15 row_mask:0xa"):
        for i in range(8):
            A(f"v_add_f32_dpp v{VG+i}, v{VG+i}, v{VG+i} {dpp} bank_mask:0xf")
    def rnd4(r, t):
        A(f"v_cvt_pk_bf16_f32 v{t}, v{r}, v{r+1}")
        A(f"v_cvt_pk_bf16_f32 v{t+1}, v{r+2}, v{r+3}")
        A(f"v_lshlrev_b32 v{r}, 16, v{t}")
        A(f"v_and_b32 v{r+1}, 0xffff0000, v{t}")
        A(f"v_lshlrev_b32 v{r+2}, 16, v{t+1}")
        A(f"v_and_b32 v{r+3}, 0xffff0000, v{t+1}")
    rnd4(VG, VG+8)
    rnd4(VG+4, VG+8)
    A("s_mov_b32 s64, 0xbfb8aa3b")
    for i in range(4):
        A(f"v_mul_f32 v{VG+8+i}, s64, v{VG+4+i}")
    for i in range(4):
        A(f"v_exp_f32 v{VG+8+i}, v{VG+8+i}")
    A("s_nop 0")
    for i in range(4):
        A(f"v_add_f32 v{VG+8+i}, 1.0, v{VG+8+i}")
    for i in range(4):
        A(f"v_rcp_f32 v{VG+8+i}, v{VG+8+i}")
    A("s_nop 0")
    for i in range(4):
        A(f"v_mul_f32 v{VG+4+i}, v{VG+4+i}, v{VG+8+i}")
    rnd4(VG+4, VG+8)
    for i in range(4):
        A(f"v_mul_f32 v{VG+i}, v{VG+i}, v{VG+4+i}")
    rnd4(VG, VG+8)
    A(f"v_lshlrev_b32 v{VG+4}, 16, v{VB}")
    A(f"v_and_b32 v{VG+5}, 0xffff0000, v{VB}")
    A(f"v_lshlrev_b32 v{VG+6}, 16, v{VB+1}")
    A(f"v_and_b32 v{VG+7}, 0xffff0000, v{VB+1}")
    for i in range(4):
        A(f"v_add_f32 v{VG+i}, v{VG+i}, v{VG+4+i}")
    A(f"v_cvt_pk_bf16_f32 v{VG+8}, v{VG}, v{VG+1}")
    A(f"v_cvt_pk_bf16_f32 v{VG+9}, v{VG+2}, v{VG+3}")
    A("s_mov_b32 s64, 0x80000000")
    A("s_mov_b32 exec_lo, s64")
    A("s_mov_b32 exec_hi, s64")
    A(f"buffer_store_dwordx2 v[{VG+8}:{VG+9}], v42, {srd(S_OUT)}, s5 offen")
    A("s_cmp_lg_u32 s2, 0")
    A("s_cbranch_scc1 L_fin")
    A("s_mov_b64 exec, 1")
    A("v_mov_b32 v12, 0")
    A("v_mov_b32 v14, s69")
    A(f"buffer_store_dword v14, v12, {srd(S_WS)}, 0 offen sc1")
    nst_compute = nstamp[0]

    nstamp[0] = max(nst_loader, nst_compute)
    Lb("L_fin")
    if stamps:
        A("s_mov_b64 exec, -1")
        stamp()
        A("s_waitcnt lgkmcnt(0)")
        A("v_mov_b32 v12, 0")
        for i in range(nstamp[0]):
            A(f"v_writelane_b32 v12, s{70+2*i}, {i}")
        A("s_mul_i32 s63, s2, 576")
        A("s_add_u32 s64, s3, 1")
        A("s_lshl_b32 s64, s64, 6")
        A("s_add_u32 s63, s63, s64")
        A(f"s_add_u32 s63, s63, {WS_STAMP}")
        A("v_lshlrev_b32 v14, 2, v1")
        A("s_mov_b64 exec, 0xffff")
        A(f"buffer_store_dword v12, v14, {srd(S_WS)}, s63 offen")
    Lb("L_end")
    A("s_endpgm")
    o.append('.section .rodata,"a"'); o.append(".p2align 6")
    o.append(f".amdhsa_kernel {NAME}_kernel")
    for l in ("next_free_vgpr 120", "next_free_sgpr 100", "accum_offset 120", "group_segment_fixed_size 0", "kernarg_size 88",
              "user_sgpr_count 2", "user_sgpr_kernarg_segment_ptr 1", "system_sgpr_workgroup_id_x 1"):
        o.append("  .amdhsa_" + l)
    o.append(".end_amdhsa_kernel")
    return "\n".join(o) + "\n"

if __name__ == "__main__":
    open(f"cdna_kernels/{NAME}.s", "w").write(gen(False))
    for G0, G in ((15, 8), (8, 8), (15, 6), (12, 12), (15, 10)):
        open(f"v3_{G0}_{G}.s", "w").write(gen(True, G0, G))
```

```python
import sys
NAME = "recurrent_scan__sliding_block_cached__dense_activation_relu__decode"

WS_EPOCH = 0
WS_Q  = 0x1000
WS_H  = WS_Q + 0x40000
WS_O  = WS_H + 0x38000
WS_ML = WS_O + 0x100000
WS_S  = WS_ML + 0x8000
WS_Y  = WS_S + 0x40000
WS_STAMP = 0x8000000

SLOT_A, SLOT_B, SLOT_C, SLOT_D = 0, 32768, 65536, 98304
SM = 131072
L_XN = SM
L_Q  = L_XN + 2 * 272
L_P  = L_Q + 8 * 272
L_O  = L_P + 8 * 272
L_H  = L_O + 2 * 272
L_M  = L_H + 2 * 272
L_F  = L_M + 256
LDS_BYTES = L_F + 64
F_LAND = 0
F_BAR  = 1
F_FREEA = 2
F_FREED = 3
F_XN = 4

TAGMASK = 0xfff
SPIN_MAX = 1 << 16
LSPIN_MAX = 1 << 22

def gen(stamps=False, G0=15, G=8, dbg=False, order=("wq", "K", "V", "w1", "wo", "w2")):
    o = []
    A = lambda s: o.append("    " + s)
    Lb = lambda s: o.append(s + ":")
    nstamp = [0]
    uid = [0]
    def stamp():
        if stamps:
            i = nstamp[0]; nstamp[0] += 1
            assert i < 14
            A(f"s_memrealtime s[{70+2*i}:{71+2*i}]")
    hdr = open(f"cdna_kernels/{NAME}.s.ref").read().split("; Override launch geometry")[0]
    o.append(hdr.rstrip())
    o.append(f"; @launch grid=(256,1,1) block=(576,1,1) lds={LDS_BYTES}")
    o.append('.amdgcn_target "amdgcn-amd-amdhsa--gfx950"')
    o.append(".text"); o.append(f".globl {NAME}_kernel"); o.append(".p2align 8"); o.append(f".type {NAME}_kernel,@function")
    Lb(f"{NAME}_kernel")
    S_WQ, S_K, S_V, S_W1, S_WO, S_W2, S_WS, S_X, S_OUT = 24, 28, 32, 36, 40, 44, 48, 52, 56
    srd = lambda r: f"s[{r}:{r+3}]"
    land = {m: i + 1 for i, m in enumerate(order)}
    stamp()
    A("s_cmp_ge_u32 s2, 256")
    A("s_cbranch_scc1 L_end")
    A("s_load_dwordx16 s[4:19], s[0:1], 0")
    A("s_load_dwordx2 s[20:21], s[0:1], 64")
    A("s_load_dwordx2 s[22:23], s[0:1], 80")
    A("v_and_b32 v1, 63, v0")
    A("v_lshrrev_b32 v12, 6, v0")
    A("v_and_b32 v2, 15, v1")
    A("v_lshrrev_b32 v3, 4, v1")
    A("v_readfirstlane_b32 s3, v12")
    A("s_and_b32 s60, s2, 7")
    A("s_lshr_b32 s61, s2, 3")
    A(f"v_mov_b32 v44, {L_F}")
    A("v_mov_b32 v14, 0")
    A("v_lshl_add_u32 v15, v2, 2, v44")
    A("ds_write_b32 v15, v14")
    A("v_lshlrev_b32 v13, 5, v1")
    A(f"s_mov_b32 s{S_X+2}, 4096")
    A(f"s_mov_b32 s{S_X+3}, 0x20000")
    A("s_sub_u32 s3, s3, 1")
    A("s_lshl_b32 s64, s3, 11")
    A("s_and_b32 s64, s64, 0x7fffffff")
    A("v_lshlrev_b32 v12, 1, v3")
    A("v_xor_b32 v4, v2, v12")
    A("v_lshlrev_b32 v4, 4, v4")
    A("v_lshl_add_u32 v28, v3, 13, v4")
    A("v_xor_b32 v29, 0x80, v28")
    A("s_lshl_b32 s63, s60, 20")
    A("s_lshl_b32 s65, s61, 8")
    A("s_add_u32 s63, s63, s65")
    A(f"s_mov_b32 s{S_WQ+2}, 8388608")
    A(f"s_mov_b32 s{S_WQ+3}, 0x20000")
    A("s_cmp_lt_i32 s3, 0")
    A("s_waitcnt lgkmcnt(0)")
    A("s_barrier")
    A(f"s_mov_b32 s{S_X}, s4"); A(f"s_mov_b32 s{S_X+1}, s5")
    A(f"s_mov_b32 s{S_WQ}, s10"); A(f"s_mov_b32 s{S_WQ+1}, s11")
    A("s_cbranch_scc1 L_loader")
    A(f"buffer_load_dwordx4 v[16:19], v13, {srd(S_X)}, s64 offen")
    A(f"buffer_load_dwordx4 v[20:23], v13, {srd(S_X)}, s64 offen offset:16")
    A("s_load_dword s62, s[22:23], 0")
    A("s_cmp_lg_u32 s3, 2")
    A("s_cbranch_scc1 L_compute")
    A("s_getpc_b64 s[64:65]")
    Lb("L_pc")
    A("v_lshlrev_b32 v15, 7, v1")
    A("v_min_u32 v15, (L_end - L_pc), v15")
    A("global_load_dword v43, v15, s[64:65]")
    A("s_branch L_compute")
    Lb("L_loader")
    def lds_wait(idx, target):
        uid[0] += 1
        l = f"L_lw{uid[0]}"
        A("s_mov_b32 s98, 0")
        Lb(l)
        A(f"ds_read_b32 v46, v44 offset:{4*idx}")
        A("s_add_u32 s98, s98, 1")
        A(f"s_cmp_gt_u32 s98, {LSPIN_MAX}")
        A(f"s_cbranch_scc1 {l}_x")
        A("s_waitcnt lgkmcnt(0)")
        A(f"v_cmp_gt_u32 vcc, {target}, v46")
        A(f"s_cbranch_vccnz {l}")
        Lb(l + "_x")
    def lds_arrive(idx):
        A("s_mov_b64 exec, 1")
        A(f"ds_add_u32 v44, v45 offset:{4*idx}")
        A("s_mov_b64 exec, -1")
    tinfo = {"wq": (S_WQ, 8192, SLOT_A), "K": (S_K, 256, SLOT_D), "V": (S_V, 256, SLOT_B), "w1": (S_W1, 7168, SLOT_C),
             "wo": (S_WO, 2048, SLOT_A), "w2": (S_W2, 2048, SLOT_D)}
    def setup(m):
        if m == "wq":
            return (28, 28, 29, 29)
        if m in ("K", "V"):
            A("s_lshl_b32 s63, s60, 23")
            A("s_lshl_b32 s64, s61, 15")
            A("s_add_u32 s63, s63, s64")
            A(f"s_add_u32 s63, s63, {28672*256}")
            if m == "K":
                A("v_xor_b32 v18, v2, v3")
                A("v_lshlrev_b32 v18, 4, v18")
                A("v_lshl_add_u32 v18, v3, 8, v18")
                A("v_xor_b32 v19, 0x40, v18")
                A("v_xor_b32 v20, 0x80, v18")
                A("v_xor_b32 v21, 0xc0, v18")
                return (18, 19, 20, 21)
            A("v_lshl_add_u32 v22, v3, 8, v4")
            A("v_xor_b32 v23, 0x80, v22")
            return (22, 22, 23, 23)
        if m == "w1":
            A("s_movk_i32 s64, 7168")
            A("v_mul_lo_u32 v24, v3, s64")
            A("v_add_u32 v24, v24, v4")
            A("v_xor_b32 v25, 0x80, v24")
            A(f"s_mul_i32 s63, s60, {128*7168}")
            A("s_lshl_b32 s64, s61, 8")
            A("s_add_u32 s63, s63, s64")
            return (24, 24, 25, 25)
        A("v_lshl_add_u32 v26, v3, 11, v4")
        A("v_xor_b32 v27, 0x80, v26")
        if m == "wo":
            A("s_lshl_b32 s63, s60, 2")
            A("s_lshr_b32 s64, s61, 3")
            A("s_add_u32 s63, s63, s64")
            A("s_lshl_b32 s63, s63, 18")
            A("s_and_b32 s64, s61, 7")
            A("s_lshl_b32 s64, s64, 8")
            A("s_add_u32 s63, s63, s64")
        else:
            A("s_mul_i32 s5, s60, 28")
            A("s_add_u32 s5, s5, s61")
            A("s_lshr_b32 s63, s5, 3")
            A("s_lshl_b32 s63, s63, 18")
            A("s_and_b32 s64, s5, 7")
            A("s_lshl_b32 s64, s64, 8")
            A("s_add_u32 s63, s63, s64")
        return (26, 26, 27, 27)
    def set_flag(val):
        A(f"v_mov_b32 v30, {val}")
        A(f"ds_write_b32 v44, v30 offset:{4*F_LAND}")
        stamp()
    def tile_loop(m, vr, g_from, g_to, win, label):
        S, rb, slot = tinfo[m]
        if g_to <= g_from: return
        A(f"s_mov_b32 s66, {g_to - g_from}")
        Lb(label)
        if win is not None: A(f"s_waitcnt vmcnt({4*(win-1)})")
        for k in range(4):
            A(f"buffer_load_dwordx4 v{vr[k]}, {srd(S)}, s63 offen offset:{k*1024} nt lds")
            inc = 4 * rb - 1024 if k < 3 else 4 * rb + 3072
            if inc: A(f"s_add_u32 s63, s63, {inc}")
        A("s_add_u32 m0, m0, 4096")
        A("s_sub_u32 s66, s66, 1")
        A("s_cmp_lg_u32 s66, 0")
        A(f"s_cbranch_scc1 {label}")
    flagged = 0
    for t, m in enumerate(order):
        S, rb, slot = tinfo[m]
        skip = m in ("w1", "w2")
        if skip:
            A("s_cmp_ge_u32 s61, 28")
            A(f"s_cbranch_scc1 L_sk{t}")
        vr = setup(m)
        if m == "wo": lds_wait(F_FREEA, 8)
        if m == "w2": lds_wait(F_FREED, 8)
        A(f"s_mov_b32 m0, {slot}")
        win = G0 if t < 2 else G
        g = 0; part = 0
        while g < 8:
            u = flagged
            gf = 8 * (u + 1) + (win - 1) - 8 * t
            if u < t and gf <= g:
                A(f"s_waitcnt vmcnt({4*(8*t + g - 8*(u+1))})")
                set_flag(u + 1); flagged += 1
                continue
            ge = min(8, gf) if u < t else 8
            tile_loop(m, vr, g, ge, None if t == 0 else win, f"L_t{t}_{part}"); part += 1
            g = ge
        if t == 0:
            for r, p, sz in ((S_K, 6, 67108864), (S_V, 8, 67108864), (S_W1, 16, 7340032), (S_WO, 12, 8388608), (S_W2, 18, 7340032), (S_WS, 22, 268435456)):
                A(f"s_mov_b32 s{r}, s{p}"); A(f"s_mov_b32 s{r+1}, s{p+1}")
                A(f"s_mov_b32 s{r+2}, {sz}"); A(f"s_mov_b32 s{r+3}, 0x20000")
        if skip:
            A(f"s_branch L_ns{t}")
            Lb(f"L_sk{t}")
            A("s_waitcnt vmcnt(0)")
            A(f"v_mov_b32 v30, {t}")
            A(f"ds_write_b32 v44, v30 offset:{4*F_LAND}")
            Lb(f"L_ns{t}")
    n = len(order)
    while flagged < n:
        rem = 8 * (n - 1 - flagged)
        A(f"s_waitcnt vmcnt({4*rem})")
        set_flag(flagged + 1); flagged += 1
    nst_loader = nstamp[0]
    A("s_branch L_fin")
    Lb("L_compute")
    nstamp[0] = 1
    for r, sz in ((S_WS, 268435456), (S_OUT, 4096)):
        A(f"s_mov_b32 s{r+2}, {sz}")
        A(f"s_mov_b32 s{r+3}, 0x20000")
    A("s_lshl_b32 s65, s3, 12")
    for r, p in ((S_WS, 22), (S_OUT, 20)):
        A(f"s_mov_b32 s{r}, s{p}"); A(f"s_mov_b32 s{r+1}, s{p+1}")
    A("v_lshrrev_b32 v12, 2, v2")
    A("v_and_b32 v13, 1, v3")
    A("v_lshl_or_b32 v13, v13, 2, v12")
    A("v_lshlrev_b32 v13, 1, v13")
    A("v_bfe_u32 v15, v2, 1, 1")
    A("s_lshl_b32 s64, s3, 1")
    A("v_add_u32 v15, s64, v15")
    A("v_xor_b32 v15, v15, v13")
    A("v_lshl_add_u32 v12, v3, 3, v12")
    A("v_lshlrev_b32 v12, 8, v12")
    A("v_lshl_add_u32 v7, v15, 4, v12")
    A("v_and_b32 v13, 1, v2")
    A("v_lshl_add_u32 v7, v13, 3, v7")
    A("v_add_u32 v8, 0x10000, v7")
    A("v_mul_u32_u24 v9, 272, v13")
    A("v_lshl_add_u32 v9, v3, 4, v9")
    A(f"v_add_u32 v9, {SM}, v9")
    A("v_and_b32 v13, 7, v2")
    A("v_mul_u32_u24 v10, 272, v13")
    A("v_lshl_add_u32 v10, v3, 4, v10")
    A(f"v_add_u32 v10, {SM}, v10")
    A("v_mov_b32 v45, 1")
    A(f"s_movk_i32 s67, {TAGMASK}")
    A("s_waitcnt lgkmcnt(0)")
    A("s_add_u32 s69, s62, 1")
    A("s_and_b32 s62, s69, s67")
    A("v_mov_b32 v11, s62")

    nbar = [0]
    def cbar():
        nbar[0] += 1
        lds_arrive(F_BAR)
        lds_wait(F_BAR, 8 * nbar[0])

    X0 = 48
    A("s_cmp_ge_u32 s3, 2")
    A("s_cbranch_scc1 L_ln_done")
    A("s_waitcnt vmcnt(0)")
    for i in range(8):
        A(f"v_lshlrev_b32 v{X0+2*i}, 16, v{16+i}")
        A(f"v_and_b32 v{X0+1+2*i}, 0xffff0000, v{16+i}")
    def tree_sum(dst, regs, tmpb):
        cur = list(regs); t = tmpb
        while len(cur) > 1:
            nxt = []
            for a in range(0, len(cur), 2):
                d = dst if len(cur) == 2 else t
                A(f"v_add_f32 v{d}, v{cur[a]}, v{cur[a+1]}")
                nxt.append(d); t += 1
            cur = nxt
    def wave_sum(v, sdst):
        for dpp in ("quad_perm:[1,0,3,2] row_mask:0xf bank_mask:0xf", "quad_perm:[2,3,0,1] row_mask:0xf bank_mask:0xf",
                    "row_half_mirror row_mask:0xf bank_mask:0xf", "row_mirror row_mask:0xf bank_mask:0xf",
                    "row_bcast:15 row_mask:0xa bank_mask:0xf", "row_bcast:31 row_mask:0xc bank_mask:0xf"):
            A("s_nop 1")
            A(f"v_add_f32_dpp v{v}, v{v}, v{v} {dpp}")
        A("s_nop 0")
        A(f"v_readlane_b32 s{sdst}, v{v}, 63")
    a, b, c, d = 64, 65, 66, 67
    D0, E0 = 68, 84
    tree_sum(a, range(X0, X0 + 16), D0)
    wave_sum(a, 63)
    A("s_nop 1")
    A(f"v_mov_b32 v{b}, s63")
    A(f"v_mul_f32 v{b}, 0x3a800000, v{b}")
    for i in range(16):
        A(f"v_sub_f32 v{D0+i}, v{X0+i}, v{b}")
    A(f"v_mul_f32 v{a}, v{D0}, v{D0}")
    A(f"v_mul_f32 v{c}, v{D0+1}, v{D0+1}")
    for i in range(2, 16, 2):
        A(f"v_fmac_f32 v{a}, v{D0+i}, v{D0+i}")
        A(f"v_fmac_f32 v{c}, v{D0+1+i}, v{D0+1+i}")
    A(f"v_add_f32 v{a}, v{a}, v{c}")
    wave_sum(a, 63)
    A("s_nop 1")
    A(f"v_mov_b32 v{c}, s63")
    A(f"v_mul_f32 v{c}, 0x3a800000, v{c}")
    A(f"v_cvt_pk_bf16_f32 v{d}, v{b}, v{c}")
    A(f"v_lshlrev_b32 v{b}, 16, v{d}")
    A(f"v_and_b32 v{c}, 0xffff0000, v{d}")
    A(f"v_add_f32 v{c}, 0x3727c5ac, v{c}")
    A(f"v_cvt_pk_bf16_f32 v{c}, v{c}, v{c}")
    A(f"v_lshlrev_b32 v{c}, 16, v{c}")
    A(f"v_sqrt_f32 v{c}, v{c}")
    A("s_nop 0")
    A(f"v_cvt_pk_bf16_f32 v{c}, v{c}, v{c}")
    A(f"v_lshlrev_b32 v{c}, 16, v{c}")
    A(f"v_rcp_f32 v{d}, v{c}")
    for i in range(16):
        A(f"v_sub_f32 v{D0+i}, v{X0+i}, v{b}")
    for i in range(8):
        A(f"v_cvt_pk_bf16_f32 v{X0+i}, v{D0+2*i}, v{D0+1+2*i}")
    for i in range(8):
        A(f"v_lshlrev_b32 v{D0+2*i}, 16, v{X0+i}")
        A(f"v_and_b32 v{D0+1+2*i}, 0xffff0000, v{X0+i}")
    for i in range(16):
        A(f"v_mul_f32 v{E0+i}, v{D0+i}, v{d}")
    for i in range(16):
        A(f"v_fma_f32 v{D0+i}, -v{E0+i}, v{c}, v{D0+i}")
    for i in range(16):
        A(f"v_fmac_f32 v{E0+i}, v{D0+i}, v{d}")
    for i in range(8):
        A(f"v_cvt_pk_bf16_f32 v{X0+i}, v{E0+2*i}, v{E0+1+2*i}")
    A(f"v_lshrrev_b32 v{a}, 3, v1")
    A(f"v_and_b32 v{b}, 7, v1")
    A(f"v_lshlrev_b32 v{b}, 5, v{b}")
    A("s_mul_i32 s63, s3, 272")
    A(f"s_add_u32 s63, s63, {L_XN}")
    A(f"v_add_u32 v{b}, s63, v{b}")
    A(f"v_cmp_eq_u32 vcc, s60, v{a}")
    A("s_mov_b64 exec, vcc")
    A(f"ds_write_b128 v{b}, v[{X0}:{X0+3}]")
    A(f"ds_write_b128 v{b}, v[{X0+4}:{X0+7}] offset:16")
    lds_arrive(F_XN)
    Lb("L_ln_done")

    def tr_reads(dst, slot):
        base = 8 if slot >= 65536 else 7
        so = slot - 65536 if slot >= 65536 else slot
        for s in range(4):
            for h in range(2):
                A(f"ds_read_b64_tr_b16 v[{dst+4*s+2*h}:{dst+4*s+2*h+1}], v{base} offset:{so + s*8192 + h*1024}")
    def act_reads(dst, vaddr, buf):
        for s in range(4):
            A(f"ds_read_b128 v[{dst+4*s}:{dst+4*s+3}], v{vaddr} offset:{buf - SM + s*64}")
    def mfma4(acc, a, b):
        for s in range(4):
            cc = "0" if s == 0 else f"v[{acc}:{acc+3}]"
            A(f"v_mfma_f32_16x16x32_bf16 v[{acc}:{acc+3}], v[{a+4*s}:{a+4*s+3}], v[{b+4*s}:{b+4*s+3}], {cc}")
    def tag4(r):
        for i in range(4):
            A(f"v_bfi_b32 v{r+i}, s67, v11, v{r+i}")
    VK, VA, VXN, VB, VD, VG = 24, 48, 64, 80, 96, 100
    EX2 = "s[6:7]"
    EX8 = "s[8:9]"
    A("s_mov_b32 s6, 0x00030003"); A("s_mov_b32 s7, 0x00030003")
    A("s_mov_b32 s8, 0x00ff00ff"); A("s_mov_b32 s9, 0x00ff00ff")
    def publish(vaddr, ex):
        A("s_nop 7")
        tag4(VD)
        A(f"s_mov_b64 exec, {ex}")
        A(f"buffer_store_dwordx4 v[{VD}:{VD+3}], v{vaddr}, {srd(S_WS)}, s63 offen sc1")
        A("s_mov_b64 exec, -1")
    A("v_lshlrev_b32 v12, 17, v2")
    A("v_lshl_add_u32 v12, v3, 4, v12")
    A("s_lshl_b32 s63, s61, 12")
    A("s_lshl_b32 s64, s60, 9")
    A("s_add_u32 s63, s63, s64")
    A("s_lshl_b32 s64, s3, 6")
    A("s_add_u32 s63, s63, s64")
    A(f"s_add_u32 s63, s63, {WS_Q}")
    lds_wait(F_XN, 2)
    act_reads(VXN, 9, L_XN)
    lds_wait(F_LAND, land["wq"])
    stamp()
    tr_reads(VA, SLOT_A)
    A("s_waitcnt lgkmcnt(0)")
    mfma4(VD, VA, VXN)
    lds_arrive(F_FREEA)
    publish(12, EX2)
    stamp()
    A("v_and_b32 v13, 31, v1")
    A("v_lshlrev_b32 v13, 4, v13")
    A("v_lshrrev_b32 v14, 5, v1")
    A("v_lshl_add_u32 v13, v14, 11, v13")
    A("s_lshr_b32 s63, s60, 2")
    A("s_lshl_b32 s63, s63, 17")
    A("s_and_b32 s64, s60, 3")
    A("s_lshl_b32 s64, s64, 15")
    A("s_add_u32 s63, s63, s64")
    A("s_add_u32 s63, s63, s65")
    A(f"s_add_u32 s66, s63, {WS_Q}")
    A("v_xor_b32 v14, v2, v3")
    A("v_lshlrev_b32 v14, 4, v14")
    A("v_lshl_add_u32 v14, v2, 8, v14")
    A(f"s_add_u32 s63, s65, {SLOT_D}")
    A("v_add_u32 v14, s63, v14")
    A("v_xor_b32 v15, 0x40, v14")
    A("v_xor_b32 v40, 0x80, v14")
    A("v_xor_b32 v41, 0xc0, v14")
    lds_wait(F_LAND, land["K"])
    stamp()
    def gather4(sreg):
        for k in range(4):
            A(f"buffer_load_dwordx4 v[{VG+4*k}:{VG+4*k+3}], v13, {srd(S_WS)}, s{sreg} offen offset:{512*k} sc1")
    gather4(66)
    for k, vr in enumerate((14, 15, 40, 41)):
        A(f"ds_read_b128 v[{VK+4*k}:{VK+4*k+3}], v{vr}")
    A("s_waitcnt lgkmcnt(0)")
    lds_arrive(F_FREED)
    def tagtest(regs):
        first = True
        for r in regs:
            A(f"v_bitop3_b32 v14, v{r}, v{r+1}, v11 bitop3:0x7e")
            A(f"v_bitop3_b32 v15, v{r+2}, v{r+3}, v11 bitop3:0x7e")
            if first:
                A("v_or_b32 v12, v14, v15"); first = False
            else:
                A("v_or3_b32 v12, v12, v14, v15")
        A("v_and_b32 v12, s67, v12")
        A("v_cmp_ne_u32 vcc, 0, v12")
    def check_tags(regs, label, reissue):
        A("s_mov_b32 s64, 0")
        Lb(label)
        A("s_waitcnt vmcnt(0)")
        tagtest(regs)
        A(f"s_cbranch_vccz {label}_ok")
        A("s_add_u32 s64, s64, 1")
        A(f"s_cmp_gt_u32 s64, {SPIN_MAX}")
        A(f"s_cbranch_scc1 {label}_ok")
        A("s_mov_b64 exec, vcc")
        reissue()
        A("s_mov_b64 exec, -1")
        A(f"s_branch {label}")
        Lb(label + "_ok")
    check_tags([VG, VG+4, VG+8, VG+12], "L_pq", lambda: gather4(66))
    stamp()
    def sum4_half(dst):
        for i in range(0, 4, 2):
            A(f"v_pk_add_f32 v[{VG+i}:{VG+i+1}], v[{VG+i}:{VG+i+1}], v[{VG+4+i}:{VG+5+i}]")
            A(f"v_pk_add_f32 v[{VG+8+i}:{VG+9+i}], v[{VG+8+i}:{VG+9+i}], v[{VG+12+i}:{VG+13+i}]")
        for i in range(0, 4, 2):
            A(f"v_pk_add_f32 v[{VG+i}:{VG+i+1}], v[{VG+i}:{VG+i+1}], v[{VG+8+i}:{VG+9+i}]")
        for i in range(4):
            A(f"v_mov_b32 v{VG+4+i}, v{VG+i}")
        A("s_nop 1")
        for i in range(4):
            A(f"v_permlane32_swap_b32 v{VG+i}, v{VG+4+i}")
        A("s_nop 1")
        for i in range(0, 4, 2):
            A(f"v_pk_add_f32 v[{dst+i}:{dst+i+1}], v[{VG+i}:{VG+i+1}], v[{VG+4+i}:{VG+5+i}]")
    sum4_half(VG)
    A(f"v_cvt_pk_bf16_f32 v{VG+4}, v{VG}, v{VG+1}")
    A(f"v_cvt_pk_bf16_f32 v{VG+5}, v{VG+2}, v{VG+3}")
    A("v_and_b32 v42, 31, v1")
    A("v_lshlrev_b32 v42, 3, v42")
    A("s_mul_i32 s63, s3, 272")
    A(f"s_add_u32 s63, s63, {L_Q}")
    A("v_add_u32 v12, s63, v42")
    A(f"ds_write_b64 v12, v[{VG+4}:{VG+5}]")
    cbar()
    act_reads(VB, 10, L_Q)
    A("s_mov_b32 s63, 0x3db504f3")
    A("s_mov_b32 s64, 0x3fb8aa3b")
    A("v_and_b32 v12, 7, v2")
    A("v_lshlrev_b32 v12, 5, v12")
    A(f"v_add_u32 v12, {L_M}, v12")
    A("s_lshl_b32 s66, s3, 2")
    A("v_add_u32 v14, s66, v12")
    A("s_waitcnt lgkmcnt(0)")
    mfma4(VD, VK, VB)
    A("s_nop 7")
    T = VG
    A(f"v_cvt_pk_bf16_f32 v{T}, v{VD}, v{VD+1}")
    A(f"v_cvt_pk_bf16_f32 v{T+1}, v{VD+2}, v{VD+3}")
    A(f"v_lshlrev_b32 v{T+2}, 16, v{T}")
    A(f"v_and_b32 v{T+3}, 0xffff0000, v{T}")
    A(f"v_lshlrev_b32 v{T+4}, 16, v{T+1}")
    A(f"v_and_b32 v{T+5}, 0xffff0000, v{T+1}")
    for i in range(4):
        A(f"v_mul_f32 v{T+2+i}, s63, v{T+2+i}")
    A(f"v_cvt_pk_bf16_f32 v{T}, v{T+2}, v{T+3}")
    A(f"v_cvt_pk_bf16_f32 v{T+1}, v{T+4}, v{T+5}")
    A(f"v_lshlrev_b32 v{T+2}, 16, v{T}")
    A(f"v_and_b32 v{T+3}, 0xffff0000, v{T}")
    A(f"v_lshlrev_b32 v{T+4}, 16, v{T+1}")
    A(f"v_and_b32 v{T+5}, 0xffff0000, v{T+1}")
    A(f"v_max3_f32 v{T+6}, v{T+2}, v{T+3}, v{T+4}")
    A(f"v_max_f32 v{T+6}, v{T+6}, v{T+5}")
    A(f"v_mov_b32 v{T+7}, v{T+6}")
    A("s_nop 1")
    A(f"v_permlane16_swap_b32 v{T+6}, v{T+7}")
    A("s_nop 1")
    A(f"v_max_f32 v{T+6}, v{T+6}, v{T+7}")
    A(f"v_mov_b32 v{T+7}, v{T+6}")
    A("s_nop 1")
    A(f"v_permlane32_swap_b32 v{T+6}, v{T+7}")
    A("s_nop 1")
    A(f"v_max_f32 v{T+6}, v{T+6}, v{T+7}")
    A(f"ds_write_b32 v14, v{T+6}")
    A("v_and_b32 v14, 7, v2")
    A("v_mul_u32_u24 v14, 272, v14")
    A("v_lshl_add_u32 v14, v3, 3, v14")
    A("s_lshl_b32 s66, s3, 5")
    A(f"s_add_u32 s66, s66, {L_P}")
    A("v_add_u32 v14, s66, v14")
    cbar()
    A(f"ds_read_b128 v[{T+8}:{T+11}], v12")
    A(f"ds_read_b128 v[{T+12}:{T+15}], v12 offset:16")
    A("s_waitcnt lgkmcnt(0)")
    A(f"v_max3_f32 v{T+6}, v{T+8}, v{T+9}, v{T+10}")
    A(f"v_max3_f32 v{T+7}, v{T+11}, v{T+12}, v{T+13}")
    A(f"v_max3_f32 v{T+6}, v{T+6}, v{T+14}, v{T+15}")
    A(f"v_max_f32 v{T+6}, v{T+6}, v{T+7}")
    for i in range(4):
        A(f"v_sub_f32 v{T+2+i}, v{T+2+i}, v{T+6}")
    for i in range(4):
        A(f"v_mul_f32 v{T+2+i}, s64, v{T+2+i}")
    for i in range(4):
        A(f"v_exp_f32 v{T+2+i}, v{T+2+i}")
    A("s_nop 0")
    A(f"v_cvt_pk_bf16_f32 v{T}, v{T+2}, v{T+3}")
    A(f"v_cvt_pk_bf16_f32 v{T+1}, v{T+4}, v{T+5}")
    A(f"ds_write_b64 v14, v[{T}:{T+1}]")
    nbar[0] += 1
    lds_arrive(F_BAR)
    for i in range(4):
        A(f"v_mov_b32 v{T+8+i}, 0x3f803f80")
    A("v_lshlrev_b32 v12, 15, v2")
    A("v_lshl_add_u32 v12, v3, 4, v12")
    A("s_and_b32 s63, s60, 3")
    A("s_lshl_b32 s63, s63, 18")
    A("s_lshr_b32 s64, s60, 2")
    A("s_lshl_b32 s64, s64, 14")
    A("s_add_u32 s63, s63, s64")
    A("s_lshl_b32 s64, s61, 9")
    A("s_add_u32 s63, s63, s64")
    A("s_lshr_b32 s66, s63, 5")
    A("s_lshl_b32 s64, s3, 6")
    A("s_add_u32 s63, s63, s64")
    A(f"s_add_u32 s63, s63, {WS_O}")
    A(f"s_add_u32 s66, s66, {WS_ML}")
    A("v_lshlrev_b32 v14, 10, v2")
    lds_wait(F_LAND, land["V"])
    tr_reads(VA, SLOT_B)
    lds_wait(F_BAR, 8 * nbar[0])
    act_reads(VB, 10, L_P)
    A("s_waitcnt lgkmcnt(0)")
    mfma4(VD, VA, VB)
    A("s_cmp_lg_u32 s3, 0")
    A("s_cbranch_scc1 L_noL")
    for s in range(4):
        cc = "0" if s == 0 else f"v[{T+12}:{T+15}]"
        A(f"v_mfma_f32_16x16x32_bf16 v[{T+12}:{T+15}], v[{T+8}:{T+11}], v[{VB+4*s}:{VB+4*s+3}], {cc}")
    Lb("L_noL")
    publish(12, EX8)
    A("s_cbranch_scc1 L_noML")
    A(f"v_mov_b32 v{T+13}, v{T+12}")
    A(f"v_mov_b32 v{T+12}, v{T+6}")
    tag4(T+12)
    A("s_mov_b64 exec, 0xff")
    A(f"buffer_store_dwordx4 v[{T+12}:{T+15}], v14, {srd(S_WS)}, s66 offen sc1")
    A("s_mov_b64 exec, -1")
    Lb("L_noML")
    stamp()
    A("s_cmp_ge_u32 s61, 28")
    A("s_cbranch_scc1 L_skip_h")
    A("v_lshlrev_b32 v12, 12, v2")
    A("v_lshl_add_u32 v12, v3, 4, v12")
    A("s_lshl_b32 s63, s61, 13")
    A("s_lshl_b32 s64, s60, 9")
    A("s_add_u32 s63, s63, s64")
    A("s_lshl_b32 s64, s3, 6")
    A("s_add_u32 s63, s63, s64")
    A(f"s_add_u32 s63, s63, {WS_H}")
    lds_wait(F_LAND, land["w1"])
    tr_reads(VA, SLOT_C)
    A("s_waitcnt lgkmcnt(0)")
    mfma4(VD, VA, VXN)
    publish(12, EX2)
    Lb("L_skip_h")
    stamp()
    A("v_and_b32 v12, 7, v1")
    A("v_lshlrev_b32 v12, 4, v12")
    A("v_lshrrev_b32 v14, 3, v1")
    A("v_lshl_add_u32 v40, v14, 11, v12")
    A("v_and_b32 v41, 31, v1")
    A("v_lshlrev_b32 v41, 4, v41")
    A("s_lshl_b32 s63, s60, 2")
    A("s_lshr_b32 s64, s61, 3")
    A("s_add_u32 s63, s63, s64")
    A("s_lshl_b32 s63, s63, 1")
    A("s_lshr_b32 s64, s3, 2")
    A("s_add_u32 s63, s63, s64")
    A("s_lshl_b32 s4, s63, 9")
    A(f"s_add_u32 s4, s4, {WS_ML}")
    A("s_lshl_b32 s63, s63, 14")
    A("s_and_b32 s64, s3, 3")
    A("s_lshl_b32 s64, s64, 7")
    A("s_add_u32 s63, s63, s64")
    A(f"s_add_u32 s66, s63, {WS_O}")
    def ogather():
        for k in range(4):
            A(f"buffer_load_dwordx4 v[{VG+4*k}:{VG+4*k+3}], v40, {srd(S_WS)}, s66 offen offset:{512*k} sc1")
        A(f"buffer_load_dwordx4 v[{VG+16}:{VG+19}], v41, {srd(S_WS)}, s4 offen sc1")
    ogather()
    check_tags([VG, VG+4, VG+8, VG+12, VG+16], "L_po", ogather)
    stamp()
    A("s_mov_b32 s64, 0x3fb8aa3b")
    MM, LL = VG + 16, VG + 17
    A(f"v_and_b32 v{MM}, 0xffff0000, v{MM}")
    A(f"v_mov_b32 v{VG+18}, v{MM}")
    for dpp in ("quad_perm:[1,0,3,2]", "quad_perm:[2,3,0,1]", "row_half_mirror", "row_mirror"):
        A("s_nop 1")
        A(f"v_max_f32_dpp v{VG+18}, v{VG+18}, v{VG+18} {dpp} row_mask:0xf bank_mask:0xf")
    A(f"v_mov_b32 v{VG+19}, v{VG+18}")
    A("s_nop 1")
    A(f"v_permlane16_swap_b32 v{VG+18}, v{VG+19}")
    A("s_nop 1")
    A(f"v_max_f32 v{VG+18}, v{VG+18}, v{VG+19}")
    A(f"v_sub_f32 v{MM}, v{MM}, v{VG+18}")
    A(f"v_mul_f32 v{MM}, s64, v{MM}")
    A(f"v_exp_f32 v{MM}, v{MM}")
    A("s_nop 0")
    A(f"v_mul_f32 v{LL}, v{LL}, v{MM}")
    for dpp in ("quad_perm:[1,0,3,2]", "quad_perm:[2,3,0,1]", "row_half_mirror", "row_mirror"):
        A("s_nop 1")
        A(f"v_add_f32_dpp v{LL}, v{LL}, v{LL} {dpp} row_mask:0xf bank_mask:0xf")
    A(f"v_mov_b32 v{VG+19}, v{LL}")
    A("s_nop 1")
    A(f"v_permlane16_swap_b32 v{LL}, v{VG+19}")
    A("s_nop 1")
    A(f"v_add_f32 v{LL}, v{LL}, v{VG+19}")
    A(f"v_rcp_f32 v{LL}, v{LL}")
    A("v_lshrrev_b32 v14, 3, v1")
    A("v_lshlrev_b32 v14, 4, v14")
    A(f"v_mul_f32 v{MM}, v{MM}, v{LL}")
    for k in range(4):
        A(f"ds_bpermute_b32 v{VB+k}, v14, v{MM} offset:{4*k}")
    A("s_waitcnt lgkmcnt(0)")
    for i in range(4):
        A(f"v_mul_f32 v{VD+i}, v{VG+i}, v{VB}")
    for k in range(1, 4):
        for i in range(4):
            A(f"v_fmac_f32 v{VD+i}, v{VG+4*k+i}, v{VB+k}")
    A("s_nop 0")
    for i in range(4):
        A(f"v_add_f32_dpp v{VD+i}, v{VD+i}, v{VD+i} row_ror:8 row_mask:0xf bank_mask:0xf")
    for swap in ("v_permlane16_swap_b32", "v_permlane32_swap_b32"):
        for i in range(4):
            A(f"v_mov_b32 v{VG+i}, v{VD+i}")
        A("s_nop 1")
        for i in range(4):
            A(f"{swap} v{VD+i}, v{VG+i}")
        A("s_nop 1")
        for i in range(0, 4, 2):
            A(f"v_pk_add_f32 v[{VD+i}:{VD+i+1}], v[{VD+i}:{VD+i+1}], v[{VG+i}:{VG+i+1}]")
    A(f"v_cvt_pk_bf16_f32 v{VG}, v{VD}, v{VD+1}")
    A(f"v_cvt_pk_bf16_f32 v{VG+1}, v{VD+2}, v{VD+3}")
    A("v_and_b32 v12, 7, v1")
    A("v_lshlrev_b32 v12, 3, v12")
    A("s_lshr_b32 s63, s3, 2")
    A("s_mul_i32 s63, s63, 272")
    A("s_and_b32 s64, s3, 3")
    A("s_lshl_b32 s64, s64, 6")
    A("s_add_u32 s63, s63, s64")
    A(f"s_add_u32 s63, s63, {L_O}")
    A("v_add_u32 v12, s63, v12")
    A(f"ds_write_b64 v12, v[{VG}:{VG+1}]")
    nbar[0] += 1
    lds_arrive(F_BAR)
    A("v_lshlrev_b32 v43, 4, v2")
    A("v_lshl_add_u32 v43, v3, 5, v43")
    A("s_and_b32 s63, s61, 7")
    A("s_lshl_b32 s63, s63, 5")
    A("s_lshl_b32 s64, s60, 2")
    A("s_add_u32 s63, s63, s64")
    A("s_lshr_b32 s64, s61, 3")
    A("s_add_u32 s63, s63, s64")
    A("s_lshl_b32 s63, s63, 10")
    A("s_lshl_b32 s64, s3, 7")
    A("s_add_u32 s63, s63, s64")
    A(f"s_add_u32 s63, s63, {WS_S}")
    A("s_mul_i32 s5, s60, 28")
    A("s_add_u32 s5, s5, s61")
    A("s_lshr_b32 s10, s5, 3")
    A("s_and_b32 s11, s5, 7")
    lds_wait(F_LAND, land["wo"])
    tr_reads(VA, SLOT_A)
    lds_wait(F_BAR, 8 * nbar[0])
    act_reads(VB, 9, L_O)
    A("s_waitcnt lgkmcnt(0)")
    mfma4(VD, VA, VB)
    publish(43, EX2)
    stamp()
    A("s_cmp_ge_u32 s61, 28")
    A("s_cbranch_scc1 L_skip_y")
    A("s_cmp_ge_u32 s3, 2")
    A("s_cbranch_scc1 L_hg_done")
    A("s_lshl_b32 s63, s10, 13")
    A("s_add_u32 s63, s63, s65")
    A(f"s_add_u32 s66, s63, {WS_H}")
    gather4(66)
    check_tags([VG, VG+4, VG+8, VG+12], "L_ph", lambda: gather4(66))
    sum4_half(VG)
    for i in range(4):
        A(f"v_max_f32 v{VG+i}, 0, v{VG+i}")
    A(f"v_cvt_pk_bf16_f32 v{VG+4}, v{VG}, v{VG+1}")
    A(f"v_cvt_pk_bf16_f32 v{VG+5}, v{VG+2}, v{VG+3}")
    A("s_mul_i32 s63, s3, 272")
    A(f"s_add_u32 s63, s63, {L_H}")
    A("v_add_u32 v12, s63, v42")
    A(f"ds_write_b64 v12, v[{VG+4}:{VG+5}]")
    lds_arrive(F_XN)
    Lb("L_hg_done")
    A("s_mul_i32 s63, s11, 28")
    A("s_add_u32 s63, s63, s10")
    A("s_lshl_b32 s63, s63, 10")
    A("s_lshl_b32 s64, s3, 7")
    A("s_add_u32 s63, s63, s64")
    A(f"s_add_u32 s63, s63, {WS_Y}")
    lds_wait(F_LAND, land["w2"])
    tr_reads(VA, SLOT_D)
    lds_wait(F_XN, 4)
    stamp()
    act_reads(VB, 9, L_H)
    A("s_waitcnt lgkmcnt(0)")
    mfma4(VD, VA, VB)
    publish(43, EX2)
    Lb("L_skip_y")
    stamp()
    A("s_cmp_lg_u32 s3, 0")
    A("s_cbranch_scc1 L_fin")
    A("v_and_b32 v12, 31, v1")
    A("v_lshrrev_b32 v14, 5, v1")
    A("v_lshlrev_b32 v14, 4, v14")
    A("v_lshl_add_u32 v40, v12, 10, v14")
    A("v_min_u32 v12, 27, v12")
    A("v_lshl_add_u32 v41, v12, 10, v14")
    A("s_lshl_b32 s63, s60, 15")
    A("s_lshl_b32 s64, s61, 5")
    A("s_add_u32 s63, s63, s64")
    A(f"s_add_u32 s66, s63, {WS_S}")
    A(f"s_mul_i32 s63, s60, {28*1024}")
    A("s_add_u32 s63, s63, s64")
    A(f"s_add_u32 s4, s63, {WS_Y}")
    A("v_lshlrev_b32 v42, 7, v14")
    A("s_lshl_b32 s5, s60, 8")
    A("s_lshl_b32 s64, s61, 3")
    A("s_add_u32 s5, s5, s64")
    A(f"buffer_load_dwordx2 v[{VB}:{VB+1}], v42, {srd(S_X)}, s5 offen")
    def fgather():
        A(f"buffer_load_dwordx4 v[{VG}:{VG+3}], v40, {srd(S_WS)}, s66 offen sc1")
        A(f"buffer_load_dwordx4 v[{VG+4}:{VG+7}], v41, {srd(S_WS)}, s4 offen sc1")
    fgather()
    check_tags([VG, VG+4], "L_pf", fgather)
    stamp()
    A("v_and_b32 v12, 31, v1")
    A("v_cmp_gt_u32 vcc, 28, v12")
    A("s_nop 1")
    for i in range(4):
        A(f"v_cndmask_b32 v{VG+4+i}, 0, v{VG+4+i}, vcc")
    for dpp in ("quad_perm:[1,0,3,2] row_mask:0xf", "quad_perm:[2,3,0,1] row_mask:0xf", "row_half_mirror row_mask:0xf",
                "row_mirror row_mask:0xf", "row_bcast:15 row_mask:0xa"):
        for i in range(8):
            A(f"v_add_f32_dpp v{VG+i}, v{VG+i}, v{VG+i} {dpp} bank_mask:0xf")
    def rnd4(r, t):
        A(f"v_cvt_pk_bf16_f32 v{t}, v{r}, v{r+1}")
        A(f"v_cvt_pk_bf16_f32 v{t+1}, v{r+2}, v{r+3}")
        A(f"v_lshlrev_b32 v{r}, 16, v{t}")
        A(f"v_and_b32 v{r+1}, 0xffff0000, v{t}")
        A(f"v_lshlrev_b32 v{r+2}, 16, v{t+1}")
        A(f"v_and_b32 v{r+3}, 0xffff0000, v{t+1}")
    rnd4(VG, VG+8)
    rnd4(VG+4, VG+8)
    A("s_mov_b32 s64, 0xbfb8aa3b")
    for i in range(4):
        A(f"v_mul_f32 v{VG+8+i}, s64, v{VG+4+i}")
    for i in range(4):
        A(f"v_exp_f32 v{VG+8+i}, v{VG+8+i}")
    A("s_nop 0")
    for i in range(4):
        A(f"v_add_f32 v{VG+8+i}, 1.0, v{VG+8+i}")
    for i in range(4):
        A(f"v_rcp_f32 v{VG+8+i}, v{VG+8+i}")
    A("s_nop 0")
    for i in range(4):
        A(f"v_mul_f32 v{VG+4+i}, v{VG+4+i}, v{VG+8+i}")
    rnd4(VG+4, VG+8)
    for i in range(4):
        A(f"v_mul_f32 v{VG+i}, v{VG+i}, v{VG+4+i}")
    rnd4(VG, VG+8)
    A(f"v_lshlrev_b32 v{VG+4}, 16, v{VB}")
    A(f"v_and_b32 v{VG+5}, 0xffff0000, v{VB}")
    A(f"v_lshlrev_b32 v{VG+6}, 16, v{VB+1}")
    A(f"v_and_b32 v{VG+7}, 0xffff0000, v{VB+1}")
    for i in range(4):
        A(f"v_add_f32 v{VG+i}, v{VG+i}, v{VG+4+i}")
    A(f"v_cvt_pk_bf16_f32 v{VG+8}, v{VG}, v{VG+1}")
    A(f"v_cvt_pk_bf16_f32 v{VG+9}, v{VG+2}, v{VG+3}")
    A("s_mov_b32 s64, 0x80000000")
    A("s_mov_b32 exec_lo, s64")
    A("s_mov_b32 exec_hi, s64")
    A(f"buffer_store_dwordx2 v[{VG+8}:{VG+9}], v42, {srd(S_OUT)}, s5 offen")
    A("s_cmp_lg_u32 s2, 0")
    A("s_cbranch_scc1 L_fin")
    A("s_mov_b64 exec, 1")
    A("v_mov_b32 v12, 0")
    A("v_mov_b32 v14, s69")
    A(f"buffer_store_dword v14, v12, {srd(S_WS)}, 0 offen sc1")
    nst_compute = nstamp[0]

    nstamp[0] = max(nst_loader, nst_compute)
    Lb("L_fin")
    if stamps:
        A("s_mov_b64 exec, -1")
        stamp()
        A("s_waitcnt lgkmcnt(0)")
        A("v_mov_b32 v12, 0")
        for i in range(nstamp[0]):
            A(f"v_writelane_b32 v12, s{70+2*i}, {i}")
        A("s_mul_i32 s63, s2, 576")
        A("s_add_u32 s64, s3, 1")
        A("s_lshl_b32 s64, s64, 6")
        A("s_add_u32 s63, s63, s64")
        A(f"s_add_u32 s63, s63, {WS_STAMP}")
        A("v_lshlrev_b32 v14, 2, v1")
        A("s_mov_b64 exec, 0xffff")
        if not dbg:
            A(f"buffer_store_dword v12, v14, {srd(S_WS)}, s63 offen")
        else:
            A("s_cmp_lg_u32 s3, 0")
            A("s_cbranch_scc1 L_end")
            A("s_cmp_ge_u32 s61, 28")
            A("s_cbranch_scc1 L_end")
            A("s_load_dwordx2 s[4:5], s[0:1], 72")
            A("v_writelane_b32 v12, s70, 15")
            A("s_not_b32 s63, s70")
            A("v_writelane_b32 v12, s63, 0")
            A("s_waitcnt lgkmcnt(0)")
            A("global_atomic_umax v14, v12, s[4:5]")
    Lb("L_end")
    A("s_endpgm")
    o.append('.section .rodata,"a"'); o.append(".p2align 6")
    o.append(f".amdhsa_kernel {NAME}_kernel")
    for l in ("next_free_vgpr 120", "next_free_sgpr 100", "accum_offset 120", "group_segment_fixed_size 0", "kernarg_size 88",
              "user_sgpr_count 2", "user_sgpr_kernarg_segment_ptr 1", "system_sgpr_workgroup_id_x 1"):
        o.append("  .amdhsa_" + l)
    o.append(".end_amdhsa_kernel")
    return "\n".join(o) + "\n"

if __name__ == "__main__":
    open(f"cdna_kernels/{NAME}.s", "w").write(gen(False))
    open(f"v3_dbg.s", "w").write(gen(True, 15, 8, True))
    for G0, G in ((15, 8), (8, 8), (15, 6), (12, 12), (15, 10)):
        open(f"v3_{G0}_{G}.s", "w").write(gen(True, G0, G))
```
